```python
import torch

def _softmax(x, axis=-1):
    return torch.softmax(x, dim=axis)
def _gelu(x):
    return torch.nn.functional.gelu(x, approximate="tanh")
def _silu(x):
    return torch.nn.functional.silu(x)
def _sigmoid(x):
    return torch.sigmoid(x)
def _layernorm(x, axis=-1, eps=1e-5):
    m = x.mean(dim=axis, keepdim=True)
    v = x.var(dim=axis, keepdim=True, unbiased=False)
    return (x - m) / torch.sqrt(v + eps)
def _scatter_add(tgt, idx, src, axis=0):
    return tgt.clone().index_add_(axis, idx, src)
def _segment_sum(src, seg, n):
    out = torch.zeros((n,) + src.shape[1:], dtype=src.dtype)
    return out.index_add_(0, seg, src)
def _pad(x, pw):
    flat = tuple(v for pair in reversed(pw) for v in pair)
    return torch.nn.functional.pad(x, flat)

kernel_name = 'gated_mix__softmax_full_mha__geglu_ffn__prompt'

def setup_inputs():

    _w = (lambda a: (lambda t: t.to(torch.bfloat16) if t.is_floating_point() else t)(torch.as_tensor(a)))
    def _A_setup():
        B, S, D = 1, 2048, 512
        return {
            "x": _w((lambda *s: torch.randn(*s, dtype=torch.bfloat16) * 0.05)(B, S, D)),
            "wqkv": _w((lambda *s: torch.randn(*s, dtype=torch.bfloat16) * 0.8)(D, 3 * D)),
            "wo": _w((lambda *s: torch.randn(*s, dtype=torch.bfloat16) * 0.05)(D, D)),
        }
    _A_in = _A_setup()

    def _B_setup():
        B, S, D, F = 1, 2048, 512, 1792
        return {
            "x": _w((lambda *s: torch.randn(*s, dtype=torch.bfloat16) * 0.05)(B, S, D)),
            "w_gate": _w((lambda *s: torch.randn(*s, dtype=torch.bfloat16) * 0.1)(D, F)),
            "w_up": _w((lambda *s: torch.randn(*s, dtype=torch.bfloat16) * 0.1)(D, F)),
            "w_down": _w((lambda *s: torch.randn(*s, dtype=torch.bfloat16) * 0.1)(F, D)),
        }
    _B_in = _B_setup()

    return {
        "A_x": _A_in["x"],
        "A_wqkv": _A_in["wqkv"],
        "A_wo": _A_in["wo"],
        "B_x": _B_in["x"],
        "B_w_gate": _B_in["w_gate"],
        "B_w_up": _B_in["w_up"],
        "B_w_down": _B_in["w_down"],
        "gate_w": _w((lambda *s: torch.randn(*s, dtype=torch.bfloat16) * 0.05)(512) * 16.0),
    }

def reference(A_x, A_wqkv, A_wo, B_x, B_w_gate, B_w_up, B_w_down, gate_w):
    def _A_ref(x, wqkv, wo):
        B, S, D = x.shape
        H = 32; Dh = D // H
        qkv = (lambda x, *d: x.permute(*d))((x @ wqkv).reshape(B, S, 3, H, Dh), 2, 0, 3, 1, 4)
        q, k, v = qkv[0], qkv[1], qkv[2]
        scale = Dh ** -0.5
        scores = torch.einsum("bhqd,bhkd->bhqk", q, k) * scale
        p = _softmax(scores, axis=-1)
        o = torch.einsum("bhqk,bhkd->bhqd", p, v)
        return (lambda x, *d: x.permute(*d))(o, 0, 2, 1, 3).reshape(B, S, D) @ wo

    def _B_ref(x, w_gate, w_up, w_down):
        return (_gelu(x @ w_gate) * (x @ w_up)) @ w_down

    x = A_x
    g = _sigmoid((x * gate_w).sum(-1, keepdims=True))
    a = _A_ref(x, A_wqkv, A_wo)
    b = _B_ref(x, B_w_gate, B_w_up, B_w_down)
    return g * a + (1 - g) * b
```

```python
class Prog:
    def __init__(self):
        self.lines = []
    def __call__(self, s):
        for l in s.strip("\n").split("\n"):
            l = l.rstrip()
            if l.strip() == "":
                continue
            if l.strip().endswith(":") and " " not in l.strip():
                self.lines.append(l.strip())
            else:
                self.lines.append("    " + l.strip())
    def text(self):
        return "\n".join(self.lines) + "\n"

def vr(base, n):
    return f"v[{base}:{base+n-1}]" if n > 1 else f"v{base}"
def sr(base, n):
    return f"s[{base}:{base+n-1}]" if n > 1 else f"s{base}"

class Alloc:
    def __init__(self, start, limit):
        self.next = start; self.limit = limit; self.names = {}
    def __call__(self, name, n=1, align=1):
        b = (self.next + align - 1)//align*align
        self.next = b + n
        assert self.next <= self.limit, f"out of regs at {name}"
        self.names[name] = (b, n)
        return b

def kernel_header(name):
    return f""".globl {name}
.p2align 8
.type {name},@function
{name}:
"""
def kernel_desc(name, nvgpr, nsgpr=96):
    acc = (nvgpr + 3)//4*4
    return f""".amdhsa_kernel {name}
  .amdhsa_next_free_vgpr {nvgpr}
  .amdhsa_next_free_sgpr {nsgpr}
  .amdhsa_accum_offset {acc}
  .amdhsa_group_segment_fixed_size 0
  .amdhsa_kernarg_size 88
  .amdhsa_user_sgpr_count 2
  .amdhsa_user_sgpr_kernarg_segment_ptr 1
  .amdhsa_system_sgpr_workgroup_id_x 1
.end_amdhsa_kernel
"""
def srd(p, d, base, nbytes):
    p(f"""
    s_mov_b32 s{d}, s{base}
    s_mov_b32 s{d+1}, s{base+1}
    s_mov_b32 s{d+2}, {nbytes:#x}
    s_mov_b32 s{d+3}, 0x20000
    """)
```

```python
import sys, math
from asmlib import *

NAME = "gated_mix__softmax_full_mha__geglu_ffn__prompt"
WS_BYTES = 268435456
WS_Q  = 0
WS_KV = 2 << 20
WS_XF = 6 << 20
WS_H  = 8 << 20
WS_O  = 16 << 20
WS_B  = 18 << 20
WS_G  = 20 << 20
WS_USED = 21 << 20
OOB = 0x40000000
LOG2E = 1.4426950408889634
import struct
def f32(x): return "0x%08x" % struct.unpack("<I", struct.pack("<f", x))[0]

MFMA = "v_mfma_f32_32x32x16_bf16"
SMF = "v_smfmac_f32_32x32x32_bf16"

def lane_wave(p, vlane, vtmp, swave):
    p(f"""
    v_and_b32 v{vlane}, 63, v0
    v_lshrrev_b32 v{vtmp}, 6, v0
    s_nop 0
    v_readfirstlane_b32 s{swave}, v{vtmp}
    """)

def tr_lane_addr(p, vd, vlane, t0, t1, hstride, rowbytes, nhbytes):
    p(f"""
    v_lshrrev_b32 v{t0}, 5, v{vlane}
    v_mul_u32_u24 v{vd}, {hstride}, v{t0}
    v_bfe_u32 v{t0}, v{vlane}, 2, 2
    v_mul_u32_u24 v{t0}, {rowbytes}, v{t0}
    v_add_u32 v{vd}, v{vd}, v{t0}
    v_bfe_u32 v{t0}, v{vlane}, 4, 1
    v_mul_u32_u24 v{t0}, {nhbytes}, v{t0}
    v_add_u32 v{vd}, v{vd}, v{t0}
    v_and_b32 v{t0}, 1, v{vlane}
    v_lshlrev_b32 v{t0}, 4, v{t0}
    v_and_b32 v{t1}, 2, v{vlane}
    v_lshlrev_b32 v{t1}, 2, v{t1}
    v_add3_u32 v{vd}, v{vd}, v{t0}, v{t1}
    """)

def k_qkv(name):
    p = Prog()
    NS = 5; SLOT = 28672
    sX, sW, sWS, sG = 12, 16, 20, 24
    sWave, sP, sMt, sXoff, sWoff, sM0, sSlot, sS, sT, sT2, sIss = 28, 29, 30, 31, 32, 33, 34, 35, 36, 37, 38
    V = Alloc(1, 128)
    vL = V("lane"); t0 = V("t0"); t1 = V("t1"); t2 = V("t2")
    vX = V("vX", 4); vW = V("vW"); vAx = V("vAx"); vAw = V("vAw"); vAxc = V("vAxc", 4); vAwc = V("vAwc")
    vL16 = V("l16")
    XF = [V("xf0", 4, 4), V("xf1", 4, 4)]
    WF = [V("wf0", 12, 4), V("wf1", 12, 4)]
    ACC = V("acc", 48, 4)
    GX = V("gx", 12, 4)
    p(f"""
    s_cmp_ge_u32 s2, 256
    s_cbranch_scc1 {name}_end
    s_load_dwordx2 s[{sX}:{sX+1}], s[0:1], 0
    s_load_dwordx2 s[{sW}:{sW+1}], s[0:1], 8
    s_load_dwordx2 s[{sWS}:{sWS+1}], s[0:1], 80
    s_load_dwordx2 s[{sG}:{sG+1}], s[0:1], 56
    s_mov_b32 s{sX+2}, 0x200000
    s_mov_b32 s{sX+3}, 0x20000
    s_mov_b32 s{sW+2}, 0x180000
    s_mov_b32 s{sW+3}, 0x20000
    s_mov_b32 s{sWS+2}, {WS_USED:#x}
    s_mov_b32 s{sWS+3}, 0x20000
    s_mov_b32 s{sG+2}, 1024
    s_mov_b32 s{sG+3}, 0x20000
    """)
    lane_wave(p, vL, t2, sWave)
    p(f"""
    s_and_b32 s{sT}, s2, 7
    s_lshr_b32 s{sT2}, s2, 3
    s_lshl_b32 s{sP}, s{sT}, 1
    s_and_b32 s{sT}, s{sT2}, 1
    s_add_u32 s{sP}, s{sP}, s{sT}
    s_lshr_b32 s{sMt}, s{sT2}, 1
    s_lshl_b32 s{sXoff}, s{sMt}, 17
    s_lshl_b32 s{sWoff}, s{sP}, 6
    v_lshlrev_b32 v{vL16}, 4, v{vL}
    v_lshrrev_b32 v{t0}, 3, v{vL}
    v_lshl_add_u32 v{t0}, v{t2}, 5, v{t0}
    v_lshlrev_b32 v{t0}, 10, v{t0}
    v_lshrrev_b32 v{t1}, 4, v{vL}
    v_xor_b32 v{t1}, v{t1}, v{vL}
    v_and_b32 v{t1}, 7, v{t1}
    v_lshl_add_u32 v{vX}, v{t1}, 4, v{t0}
    v_xor_b32 v{vX+1}, 64, v{vX}
    v_add_u32 v{vX+1}, {7168}, v{vX+1}
    v_add_u32 v{vX+2}, {2*7168}, v{vX}
    v_add_u32 v{vX+3}, {2*7168}, v{vX+1}
    v_lshrrev_b32 v{t0}, 2, v{vL}
    v_lshl_add_u32 v{t0}, v{t2}, 4, v{t0}
    v_mul_u32_u24 v{t0}, 3072, v{t0}
    v_and_b32 v{t1}, 3, v{vL}
    v_lshl_add_u32 v{vW}, v{t1}, 4, v{t0}
    s_lshl_b32 s{sT}, s2, 13
    s_lshl_b32 s{sT2}, s{sWave}, 11
    s_add_u32 s{sT}, s{sT}, s{sT2}
    s_mov_b32 s{sSlot}, 0
    s_mov_b32 s{sIss}, 0
    s_waitcnt lgkmcnt(0)
    buffer_load_dwordx4 {vr(GX,4)}, v{vL16}, s[{sX}:{sX+3}], s{sT} offen
    buffer_load_dwordx4 {vr(GX+4,4)}, v{vL16}, s[{sX}:{sX+3}], s{sT} offen offset:1024
    buffer_load_dwordx4 {vr(GX+8,4)}, v{vL16}, s[{sG}:{sG+3}], 0 offen
    """)
    def dma():
        p(f"""
        s_lshl_b32 s{sT}, s{sWave}, 12
        s_add_u32 m0, s{sM0}, s{sT}
        s_mul_i32 s{sT2}, s{sWave}, 3072
        buffer_load_dwordx4 v{vX}, s[{sX}:{sX+3}], s{sXoff} offen lds
        buffer_load_dwordx4 v{vX+1}, s[{sX}:{sX+3}], s{sXoff} offen offset:1024 lds
        buffer_load_dwordx4 v{vX+2}, s[{sX}:{sX+3}], s{sXoff} offen offset:2048 lds
        buffer_load_dwordx4 v{vX+3}, s[{sX}:{sX+3}], s{sXoff} offen offset:3072 lds
        s_add_u32 s{sT2}, s{sT2}, s{sM0}
        s_add_u32 m0, s{sT2}, 16384
        s_add_u32 s{sXoff}, s{sXoff}, 128
        buffer_load_dwordx4 v{vW}, s[{sW}:{sW+3}], s{sWoff} offen lds
        buffer_load_dwordx4 v{vW}, s[{sW}:{sW+3}], s{sWoff} offen offset:1024 lds
        buffer_load_dwordx4 v{vW}, s[{sW}:{sW+3}], s{sWoff} offen offset:2048 lds
        s_add_u32 s{sWoff}, s{sWoff}, {64*3072}
        s_add_u32 s{sM0}, s{sM0}, {SLOT}
        s_cmp_eq_u32 s{sM0}, {NS*SLOT}
        s_cselect_b32 s{sM0}, 0, s{sM0}
        s_add_u32 s{sIss}, s{sIss}, 1
        s_cmp_eq_u32 s{sIss}, 8
        s_cselect_b32 s{sXoff}, {OOB}, s{sXoff}
        """)
    p(f"s_mov_b32 s{sM0}, 0")
    p(f"{name}_pro:")
    dma()
    p(f"""
    s_cmp_lt_u32 s{sIss}, {NS-1}
    s_cbranch_scc1 {name}_pro
    """)
    p(f"""
    v_and_b32 v{t0}, 31, v{vL}
    v_lshlrev_b32 v{vAx}, 7, v{t0}
    v_lshl_add_u32 v{vAx}, v{t2}, 12, v{vAx}
    v_bfe_u32 v{t0}, v{vL}, 1, 3
    v_lshrrev_b32 v{t1}, 5, v{vL}
    v_xor_b32 v{t0}, v{t0}, v{t1}
    v_lshl_add_u32 v{vAx}, v{t0}, 4, v{vAx}
    """)
    tr_lane_addr(p, vAw, vL, t0, t1, 512, 64, 32)
    p(f"v_add_u32 v{vAw}, 16384, v{vAw}")
    for i in range(48): p(f"v_mov_b32 v{ACC+i}, 0")
    for i in range(4): p(f"v_mov_b32 v{XF[1]+i}, 0")
    for i in range(12): p(f"v_mov_b32 v{WF[1]+i}, 0")
    p(f"""
    s_waitcnt vmcnt({7*(NS-1)})
    v_dot2_f32_bf16 v{t0}, v{GX}, v{GX+8}, 0
    v_dot2_f32_bf16 v{t1}, v{GX+4}, v{GX+8}, 0
    """)
    for i in range(1, 4):
        p(f"v_dot2_f32_bf16 v{t0}, v{GX+i}, v{GX+8+i}, v{t0}")
        p(f"v_dot2_f32_bf16 v{t1}, v{GX+4+i}, v{GX+8+i}, v{t1}")
    p(f"""
    s_nop 3
    v_permlane32_swap_b32 v{t0}, v{t1}
    s_nop 1
    v_add_f32 v{t0}, v{t0}, v{t1}
    s_nop 1
    v_add_f32_dpp v{t0}, v{t0}, v{t0} row_ror:8 row_mask:0xf bank_mask:0xf
    s_nop 1
    v_add_f32_dpp v{t0}, v{t0}, v{t0} row_ror:4 row_mask:0xf bank_mask:0xf
    s_nop 1
    v_add_f32_dpp v{t0}, v{t0}, v{t0} row_ror:2 row_mask:0xf bank_mask:0xf
    s_nop 1
    v_add_f32_dpp v{t0}, v{t0}, v{t0} row_ror:1 row_mask:0xf bank_mask:0xf
    v_mov_b32 v{t1}, v{t0}
    s_nop 1
    v_permlane16_swap_b32 v{t0}, v{t1}
    s_nop 1
    v_add_f32 v{t0}, v{t0}, v{t1}
    v_cvt_pk_bf16_f32 v{t0}, v{t0}, v{t0}
    v_lshlrev_b32 v{t0}, 16, v{t0}
    v_mul_f32 v{t0}, {f32(-LOG2E)}, v{t0}
    v_exp_f32 v{t0}, v{t0}
    s_nop 0
    v_add_f32 v{t0}, 1.0, v{t0}
    v_rcp_f32 v{t0}, v{t0}
    s_nop 0
    v_cvt_pk_bf16_f32 v{t0}, v{t0}, v{t0}
    v_lshlrev_b32 v{GX}, 16, v{t0}
    v_lshrrev_b32 v{t1}, 5, v{vL}
    v_lshl_add_u32 v{t1}, v{t2}, 1, v{t1}
    v_lshlrev_b32 v{GX+1}, 2, v{t1}
    s_mov_b32 s{sS}, 0
    """)
    def reads(ks, b):
        p(f"ds_read_b128 {vr(XF[b],4)}, v{vAxc+ks}")
        for t in range(3):
            for ab in range(2):
                p(f"ds_read_b64_tr_b16 {vr(WF[b]+4*t+2*ab,2)}, v{vAwc} offset:{ks*3072 + t*1024 + ab*256}")
    def mfmas(b):
        p(f"{MFMA} {vr(ACC,16)}, {vr(WF[b],4)}, {vr(XF[b],4)}, {vr(ACC,16)}")
        p(f"{MFMA} {vr(ACC+16,16)}, {vr(WF[b]+4,4)}, {vr(XF[b],4)}, {vr(ACC+16,16)}")
        p(f"{MFMA} {vr(ACC+32,16)}, {vr(XF[b],4)}, {vr(WF[b]+8,4)}, {vr(ACC+32,16)}")
    def xstore(b, ks):
        p(f"buffer_store_dwordx4 {vr(XF[b],4)}, v{vL16}, s[{sWS}:{sWS+3}], s39 offen offset:{ks*1024}")
    p(f"{name}_loop:")
    p(f"""
    v_add_u32 v{vAxc}, s{sSlot}, v{vAx}
    v_add_u32 v{vAwc}, s{sSlot}, v{vAw}
    v_xor_b32 v{vAxc+1}, 32, v{vAxc}
    v_xor_b32 v{vAxc+2}, 64, v{vAxc}
    v_xor_b32 v{vAxc+3}, 96, v{vAxc}
    s_waitcnt vmcnt({7*(NS-2)}) lgkmcnt(0)
    s_barrier
    """)
    reads(0, 0)
    dma()
    mfmas(1)
    reads(1, 1)
    p("s_waitcnt lgkmcnt(7)")
    mfmas(0)
    reads(2, 0)
    p("s_waitcnt lgkmcnt(7)")
    mfmas(1)
    reads(3, 1)
    p("s_waitcnt lgkmcnt(7)")
    mfmas(0)
    p(f"""
    s_cmp_lg_u32 s{sS}, s{sP}
    s_cbranch_scc1 {name}_noexp
    ds_read_b128 {vr(GX+4,4)}, v{vAxc}
    ds_read_b128 {vr(GX+8,4)}, v{vAxc+1}
    s_lshl_b32 s{sT}, s{sMt}, 2
    s_add_u32 s{sT}, s{sT}, s{sWave}
    s_lshl_b32 s{sT}, s{sT}, 15
    s_lshl_b32 s{sT2}, s{sS}, 12
    s_add_u32 s{sT}, s{sT}, s{sT2}
    s_add_u32 s{sT}, s{sT}, {WS_XF}
    s_waitcnt lgkmcnt(0)
    buffer_store_dwordx4 {vr(GX+4,4)}, v{vL16}, s[{sWS}:{sWS+3}], s{sT} offen
    buffer_store_dwordx4 {vr(GX+8,4)}, v{vL16}, s[{sWS}:{sWS+3}], s{sT} offen offset:1024
    buffer_store_dwordx4 {vr(XF[0],4)}, v{vL16}, s[{sWS}:{sWS+3}], s{sT} offen offset:2048
    buffer_store_dwordx4 {vr(XF[1],4)}, v{vL16}, s[{sWS}:{sWS+3}], s{sT} offen offset:3072
    s_waitcnt vmcnt(0)
    {name}_noexp:
    s_add_u32 s{sSlot}, s{sSlot}, {SLOT}
    s_cmp_eq_u32 s{sSlot}, {NS*SLOT}
    s_cselect_b32 s{sSlot}, 0, s{sSlot}
    s_add_u32 s{sS}, s{sS}, 1
    s_cmp_lt_u32 s{sS}, 8
    s_cbranch_scc1 {name}_loop
    s_waitcnt lgkmcnt(0)
    """)
    mfmas(1)
    sQ, sKV = 40, 41
    p(f"""
    s_lshl_b32 s{sT}, s2, 5
    s_add_u32 s{sT}, s{sT}, {WS_G}
    buffer_store_dword v{GX}, v{GX+1}, s[{sWS}:{sWS+3}], s{sT} offen
    s_lshl_b32 s{sT}, s{sMt}, 2
    s_add_u32 s{sT}, s{sT}, s{sWave}
    s_lshl_b32 s{sT2}, s{sP}, 7
    s_add_u32 s{sT}, s{sT}, s{sT2}
    s_lshl_b32 s{sQ}, s{sT}, 10
    s_lshl_b32 s{sKV}, s{sT}, 11
    s_add_u32 s{sKV}, s{sKV}, {WS_KV}
    s_mov_b32 s{42}, {f32(0.25*LOG2E)}
    s_mov_b32 s{43}, {f32(0.25*LOG2E)}
    v_and_b32 v{t0}, 0x33, v{vL}
    v_and_b32 v{t1}, 4, v{vL}
    v_lshl_or_b32 v{t0}, v{t1}, 1, v{t0}
    v_and_b32 v{t1}, 8, v{vL}
    v_lshrrev_b32 v{t1}, 1, v{t1}
    v_or_b32 v{t0}, v{t0}, v{t1}
    v_lshlrev_b32 v{t0}, 4, v{t0}
    ; V store offset: (c/16)*131072 + 1024 + h*256 + (c%16)*16
    v_and_b32 v{t1}, 15, v{vL}
    v_lshlrev_b32 v{t1}, 4, v{t1}
    v_bfe_u32 v{t2}, v{vL}, 4, 1
    v_lshl_add_u32 v{t1}, v{t2}, 17, v{t1}
    v_lshrrev_b32 v{t2}, 5, v{vL}
    v_lshl_add_u32 v{t1}, v{t2}, 8, v{t1}
    s_add_u32 s{sT}, s{sQ}, 65536
    s_add_u32 s{sT2}, s{sKV}, 131072
    """)
    for i in range(8):
        p(f"v_pk_mul_f32 {vr(ACC+2*i,2)}, {vr(ACC+2*i,2)}, s[42:43]")
    for t in range(3):
        for i in range(8):
            p(f"v_cvt_pk_bf16_f32 v{ACC+16*t+i}, v{ACC+16*t+2*i}, v{ACC+16*t+2*i+1}")
        if t == 0:
            p(f"buffer_store_dwordx4 {vr(ACC,4)}, v{vL16}, s[{sWS}:{sWS+3}], s{sQ} offen")
            p(f"buffer_store_dwordx4 {vr(ACC+4,4)}, v{vL16}, s[{sWS}:{sWS+3}], s{sT} offen")
        elif t == 1:
            p(f"buffer_store_dwordx4 {vr(ACC+16,4)}, v{t0}, s[{sWS}:{sWS+3}], s{sKV} offen")
            p(f"buffer_store_dwordx4 {vr(ACC+20,4)}, v{t0}, s[{sWS}:{sWS+3}], s{sT2} offen")
        else:
            p(f"buffer_store_dwordx4 {vr(ACC+32,4)}, v{t1}, s[{sWS}:{sWS+3}], s{sKV} offen offset:1024")
            p(f"buffer_store_dwordx4 {vr(ACC+36,4)}, v{t1}, s[{sWS}:{sWS+3}], s{sKV} offen offset:1536")
    p(f"{name}_end:")
    p("s_endpgm")
    return p.text(), V.next, NS*SLOT, 256

def k_attn(name):
    p = Prog()
    NR = 4; CH = 16384
    sWS = 12
    sWave, sHead, sQb, sT, sT2, sSrc, sDst, sC, sRd = 16, 17, 18, 19, 20, 21, 22, 23, 24
    sMask = 26
    sO = 28
    V = Alloc(1, 256)
    vL = V("lane"); t0 = V("t0"); t1 = V("t1"); t2 = V("t2"); vL16 = V("l16"); vDma = V("dma")
    vK0 = V("vK0"); vV0 = V("vV0"); vK = V("vK"); vV = V("vV"); vIdx = V("idx")
    QA = V("QA", 4, 4); QB = V("QB", 4, 4)
    KF = [V(f"K{i}", 4, 4) for i in range(2)]
    VF = [V(f"V{i}", 8, 4) for i in range(4)]
    SA = [V(f"SA{i}", 16, 4) for i in range(2)]
    SB = [V(f"SB{i}", 16, 4) for i in range(2)]
    OA = V("OA", 16, 4); OB = V("OB", 16, 4); CA = V("CA", 16, 4); CB = V("CB", 16, 4)
    p(f"""
    s_cmp_ge_u32 s2, 256
    s_cbranch_scc1 {name}_end
    s_load_dwordx2 s[{sWS}:{sWS+1}], s[0:1], 80
    s_mov_b32 s{sWS+2}, {WS_USED:#x}
    s_mov_b32 s{sWS+3}, 0x20000
    """)
    lane_wave(p, vL, t2, sWave)
    p(f"""
    s_and_b32 s{sT}, s2, 7
    s_lshr_b32 s{sT2}, s2, 3
    s_lshl_b32 s{sHead}, s{sT}, 2
    s_and_b32 s{sT}, s{sT2}, 3
    s_add_u32 s{sHead}, s{sHead}, s{sT}
    s_lshr_b32 s{sQb}, s{sT2}, 2
    v_lshlrev_b32 v{vL16}, 4, v{vL}
    v_lshl_add_u32 v{vDma}, v{t2}, 12, v{vL16}
    s_lshl_b32 s{sSrc}, s{sHead}, 17
    s_add_u32 s{sSrc}, s{sSrc}, {WS_KV}
    s_lshl_b32 s{sDst}, s{sWave}, 12
    s_lshl_b32 s{sT}, s{sQb}, 3
    s_lshl_b32 s{sT2}, s{sWave}, 1
    s_add_u32 s{sT}, s{sT}, s{sT2}
    s_lshl_b32 s{sO}, s{sT}, 15
    s_lshl_b32 s{sT2}, s{sHead}, 10
    s_add_u32 s{sO}, s{sO}, s{sT2}
    s_add_u32 s{sO}, s{sO}, {WS_O}
    s_lshl_b32 s{sT2}, s{sHead}, 6
    s_add_u32 s{sT}, s{sT}, s{sT2}
    s_lshl_b32 s{sT}, s{sT}, 10
    s_mov_b32 s{sC}, 0
    s_waitcnt lgkmcnt(0)
    buffer_load_dwordx4 {vr(QA,4)}, v{vL16}, s[{sWS}:{sWS+3}], s{sT} offen
    buffer_load_dwordx4 {vr(QB,4)}, v{vL16}, s[{sWS}:{sWS+3}], s{sT} offen offset:1024
    """)
    def dma():
        p(f"""
        s_mov_b32 m0, s{sDst}
        s_add_u32 s{sDst}, s{sDst}, {CH}
        buffer_load_dwordx4 v{vDma}, s[{sWS}:{sWS+3}], s{sSrc} offen lds
        buffer_load_dwordx4 v{vDma}, s[{sWS}:{sWS+3}], s{sSrc} offen offset:1024 lds
        buffer_load_dwordx4 v{vDma}, s[{sWS}:{sWS+3}], s{sSrc} offen offset:2048 lds
        buffer_load_dwordx4 v{vDma}, s[{sWS}:{sWS+3}], s{sSrc} offen offset:3072 lds
        s_and_b32 s{sDst}, s{sDst}, {NR*CH-1}
        s_add_u32 s{sSrc}, s{sSrc}, {CH}
        """)
    p(f"{name}_pro:")
    dma()
    p(f"""
    s_add_u32 s{sC}, s{sC}, 1
    s_cmp_lt_u32 s{sC}, {NR}
    s_cbranch_scc1 {name}_pro
    s_mov_b32 s{sMask}, 0x0000ffff
    s_mov_b32 s{sMask+1}, 0x0000ffff
    v_mov_b32 v{vIdx}, 0xdddddddd
    v_mov_b32 v{vK}, v{vL16}
    v_and_b32 v{t0}, 15, v{vL}
    v_lshlrev_b32 v{t0}, 4, v{t0}
    v_lshrrev_b32 v{t1}, 5, v{vL}
    v_lshl_add_u32 v{vV0}, v{t1}, 8, v{t0}
    v_add_u32 v{vV0}, 1024, v{vV0}
    v_mov_b32 v{vV}, v{vV0}
    """)
    for b in range(4):
        for i in range(8): p(f"v_mov_b32 v{VF[b]+i}, 0x3f803f80")
    for i in range(16):
        p(f"v_mov_b32 v{OA+i}, 0")
        p(f"v_mov_b32 v{OB+i}, 0")
        p(f"v_mov_b32 v{SB[1]+i}, 0")
    def kread(j, b): p(f"ds_read_b128 {vr(KF[b],4)}, v{vK} offset:{j*2048}")
    def vread(j, b):
        p(f"s_mov_b64 exec, s[{sMask}:{sMask+1}]")
        p(f"ds_read_b128 {vr(VF[b],4)}, v{vV} offset:{j*2048}")
        p(f"ds_read_b128 {vr(VF[b]+4,4)}, v{vV} offset:{j*2048+512}")
        p(f"s_mov_b64 exec, -1")
    p(f"""
    s_waitcnt vmcnt({4*(NR-1)})
    s_barrier
    """)
    kread(0, 0); kread(1, 1); vread(0, 0); vread(1, 1)
    p(f"""
    s_waitcnt lgkmcnt(0)
    {MFMA} {vr(SA[0],16)}, {vr(KF[0],4)}, {vr(QA,4)}, 0
    {MFMA} {vr(SB[0],16)}, {vr(KF[0],4)}, {vr(QB,4)}, 0
    s_nop 15
    """)
    def rowmax(S, C, T):
        p(f"v_max3_f32 v{T}, v{S}, v{S+1}, v{S+2}")
        for i in range(3, 15, 2):
            p(f"v_max3_f32 v{T}, v{S+i}, v{S+i+1}, v{T}")
        p(f"v_max_f32 v{T}, v{S+15}, v{T}")
    def bcast_neg(T, T2, C):
        p(f"""
        v_mov_b32 v{T2}, v{T}
        s_nop 1
        v_permlane32_swap_b32 v{T}, v{T2}
        s_nop 1
        v_max_f32 v{T}, v{T}, v{T2}
        """)
        for i in range(16): p(f"v_sub_f32 v{C+i}, 0, v{T}")
    rowmax(SA[0], CA, t0)
    bcast_neg(t0, t1, CA)
    rowmax(SB[0], CB, t0)
    bcast_neg(t0, t1, CB)
    p(f"""
    s_nop 1
    {MFMA} {vr(SA[0],16)}, {vr(KF[0],4)}, {vr(QA,4)}, {vr(CA,16)}
    {MFMA} {vr(SB[0],16)}, {vr(KF[0],4)}, {vr(QB,4)}, {vr(CB,16)}
    s_mov_b32 s{sC}, 0
    s_mov_b32 s{sRd}, 0
    s_nop 15
    s_branch {name}_mid
    """)
    def phase(S, mf, extra):
        for i in range(16):
            if i == 2: p(mf[0])
            if i == 7: p(mf[1])
            if i == 12: p(mf[2])
            if i in extra: extra[i]()
            p(f"v_exp_f32 v{S+i}, v{S+i}")
    def tile(j):
        tb = j % 2; vb = (j + 2) % 4; vprev = (j + 1) % 4
        mfA = [f"{SMF} {vr(OB,16)}, {vr(VF[vprev],4)}, {vr(SB[1-tb],8)}, v{vIdx}",
               f"{SMF} {vr(OB,16)}, {vr(VF[vprev]+4,4)}, {vr(SB[1-tb]+8,8)}, v{vIdx}",
               f"{MFMA} {vr(SA[1-tb],16)}, {vr(KF[1-tb],4)}, {vr(QA,4)}, {vr(CA,16)}"]
        mfB = [f"{SMF} {vr(OA,16)}, {vr(VF[vb],4)}, {vr(SA[tb],8)}, v{vIdx}",
               f"{SMF} {vr(OA,16)}, {vr(VF[vb]+4,4)}, {vr(SA[tb]+8,8)}, v{vIdx}",
               f"{MFMA} {vr(SB[1-tb],16)}, {vr(KF[1-tb],4)}, {vr(QB,4)}, {vr(CB,16)}"]
        def kr():
            p("s_waitcnt lgkmcnt(0)")
            kread(j, tb)
        phase(SA[tb], mfA, {1: kr})
        phase(SB[tb], mfB, {5: lambda: vread(j, j % 4)})
    p(f"{name}_top:")
    p(f"""
    s_add_u32 s{sRd}, s{sRd}, {CH}
    s_and_b32 s{sRd}, s{sRd}, {NR*CH-1}
    v_add_u32 v{vK}, s{sRd}, v{vL16}
    v_add_u32 v{vV}, s{sRd}, v{vV0}
    s_cmp_ge_u32 s{sC}, {8-NR+1}
    s_cbranch_scc1 {name}_nodma
    s_waitcnt vmcnt({4*(NR-2)}) lgkmcnt(0)
    s_barrier
    """)
    dma()
    p(f"""
    s_branch {name}_go
    {name}_nodma:
    s_waitcnt vmcnt(0) lgkmcnt(0)
    s_barrier
    {name}_go:
    """)
    tile(0); tile(1)
    p(f"""
    s_cmp_eq_u32 s{sC}, 8
    s_cbranch_scc1 {name}_fin
    {name}_mid:
    """)
    for j in range(2, 8): tile(j)
    p(f"""
    s_add_u32 s{sC}, s{sC}, 1
    s_branch {name}_top
    {name}_fin:
    s_nop 1
    {SMF} {vr(OB,16)}, {vr(VF[3],4)}, {vr(SB[1],8)}, v{vIdx}
    {SMF} {vr(OB,16)}, {vr(VF[3]+4,4)}, {vr(SB[1]+8,8)}, v{vIdx}
    s_nop 15
    """)
    def fin(O, off):
        p(f"v_rcp_f32 v{t0}, v{O+8}")
        p("s_nop 0")
        for i in range(8): p(f"v_mul_f32 v{O+i}, v{O+i}, v{t0}")
        for i in range(4): p(f"v_cvt_pk_bf16_f32 v{O+i}, v{O+2*i}, v{O+2*i+1}")
        p(f"buffer_store_dwordx4 {vr(O,4)}, v{vL16}, s[{sWS}:{sWS+3}], s{off} offen")
    p(f"s_add_u32 s{sT}, s{sO}, 32768")
    fin(OA, sO)
    fin(OB, sT)
    p(f"{name}_end:")
    p("s_endpgm")
    return p.text(), V.next, NR*CH, 256

def k_up(name):
    p = Prog()
    NS = 4; SLOT = 16640; UP = 8192 + 128
    XD = 4
    sWS, sWg, sWu = 12, 16, 20
    sWave, sMt, sFt, sT, sT2, sWoff, sM0, sIss, sSlot, sS, sXoff, sH = 24, 25, 26, 27, 28, 29, 30, 31, 32, 33, 34, 35
    V = Alloc(1, 256)
    vL = V("lane"); t0 = V("t0"); t1 = V("t1"); t2 = V("t2"); vL16 = V("l16")
    vW = V("vW", 2); vAw = V("vAw"); vAwc = V("vAwc")
    XF = [V(f"xf{i}", 8, 4) for i in range(XD)]
    WF = [V("wf0", 28, 4), V("wf1", 28, 4)]
    ACC = V("acc", 112, 4)
    p(f"""
    s_cmp_ge_u32 s2, 256
    s_cbranch_scc1 {name}_end
    s_load_dwordx2 s[{sWS}:{sWS+1}], s[0:1], 80
    s_load_dwordx2 s[{sWg}:{sWg+1}], s[0:1], 32
    s_load_dwordx2 s[{sWu}:{sWu+1}], s[0:1], 40
    s_mov_b32 s{sWS+2}, {WS_USED:#x}
    s_mov_b32 s{sWS+3}, 0x20000
    s_mov_b32 s{sWg+2}, {512*3584}
    s_mov_b32 s{sWg+3}, 0x20000
    s_mov_b32 s{sWu+2}, {512*3584}
    s_mov_b32 s{sWu+3}, 0x20000
    """)
    lane_wave(p, vL, t2, sWave)
    p(f"""
    s_and_b32 s{sT}, s2, 1
    s_lshl_b32 s{sMt}, s{sT}, 3
    s_bfe_u32 s{sT}, s2, 0x30003
    s_add_u32 s{sMt}, s{sMt}, s{sT}
    s_bfe_u32 s{sT}, s2, 0x20001
    s_lshl_b32 s{sFt}, s{sT}, 2
    s_lshr_b32 s{sT}, s2, 6
    s_add_u32 s{sFt}, s{sFt}, s{sT}
    v_lshlrev_b32 v{vL16}, 4, v{vL}
    ; W dma offsets: g = lane (+64): row = g/14, c = g%14
    v_mul_u32_u24 v{t0}, 4682, v{vL}
    v_lshrrev_b32 v{t0}, 16, v{t0}
    v_mul_u32_u24 v{t0}, {3584-224}, v{t0}
    v_add_u32 v{vW}, v{t0}, v{vL16}
    v_add_u32 v{t1}, 64, v{vL}
    v_mul_u32_u24 v{t0}, 4682, v{t1}
    v_lshrrev_b32 v{t0}, 16, v{t0}
    v_mul_u32_u24 v{t0}, {3584-224}, v{t0}
    v_add_u32 v{vW+1}, v{t0}, v{vL16}
    v_mov_b32 v{t0}, {OOB}
    v_cmp_gt_u32 vcc, 48, v{vL}
    s_mul_i32 s{sWoff}, s{sFt}, 224
    s_mul_i32 s{sT}, s{sWave}, {8*3584}
    v_cndmask_b32 v{vW+1}, v{t0}, v{vW+1}, vcc
    s_add_u32 s{sWoff}, s{sWoff}, s{sT}
    s_lshl_b32 s{sM0}, s{sWave}, 11
    s_lshl_b32 s{sT}, s{sMt}, 2
    s_add_u32 s{sT}, s{sT}, s{sWave}
    s_lshl_b32 s{sXoff}, s{sT}, 15
    s_add_u32 s{sXoff}, s{sXoff}, {WS_XF}
    s_mul_i32 s{sH}, s{sT}, 112
    s_mul_i32 s{sT}, s{sFt}, 7
    s_add_u32 s{sH}, s{sH}, s{sT}
    s_lshl_b32 s{sH}, s{sH}, 10
    s_add_u32 s{sH}, s{sH}, {WS_H}
    s_mov_b32 s{sIss}, 0
    s_mov_b32 s{sSlot}, 0
    s_waitcnt lgkmcnt(0)
    """)
    def dma(xb):
        p(f"""
        s_mov_b32 m0, s{sM0}
        s_add_u32 s{sT}, s{sM0}, {UP}
        buffer_load_dwordx4 v{vW}, s[{sWg}:{sWg+3}], s{sWoff} offen lds
        buffer_load_dwordx4 v{vW+1}, s[{sWg}:{sWg+3}], s{sWoff} offen offset:1024 lds
        s_mov_b32 m0, s{sT}
        s_add_u32 s{sM0}, s{sM0}, {SLOT}
        buffer_load_dwordx4 v{vW}, s[{sWu}:{sWu+3}], s{sWoff} offen lds
        buffer_load_dwordx4 v{vW+1}, s[{sWu}:{sWu+3}], s{sWoff} offen offset:1024 lds
        buffer_load_dwordx4 {vr(XF[xb],4)}, v{vL16}, s[{sWS}:{sWS+3}], s{sXoff} offen
        buffer_load_dwordx4 {vr(XF[xb]+4,4)}, v{vL16}, s[{sWS}:{sWS+3}], s{sXoff} offen offset:1024
        s_add_u32 s{sWoff}, s{sWoff}, {32*3584}
        s_add_u32 s{sXoff}, s{sXoff}, 2048
        """)
    for i in range(NS-1): dma(i)
    tr_lane_addr(p, vAw, vL, t0, t1, 2048, 224, UP)
    for i in range(112): p(f"v_mov_b32 v{ACC+i}, 0")
    for i in range(28): p(f"v_mov_b32 v{WF[1]+i}, 0")
    for i in range(4): p(f"v_mov_b32 v{XF[3]+4+i}, 0")
    p(f"s_mov_b32 s{sS}, 0")
    def reads(slot, ks, b):
        for t in range(7):
            for ab in range(2):
                p(f"ds_read_b64_tr_b16 {vr(WF[b]+4*t+2*ab,2)}, v{vAw} offset:{slot*SLOT + ks*4096 + ab*896 + t*32}")
    def mfmas(b, xf):
        for t in range(7):
            p(f"{MFMA} {vr(ACC+16*t,16)}, {vr(WF[b]+4*t,4)}, {vr(xf,4)}, {vr(ACC+16*t,16)}")
    p(f"{name}_loop:")
    for u in range(4):
        p(f"""
        s_waitcnt vmcnt({6*(NS-2)}) lgkmcnt(0)
        s_barrier
        """)
        reads(u, 0, 0)
        mfmas(1, XF[(u+3) % 4] + 4)
        if u == 1:
            p(f"""
            s_lshl_b32 s{sM0}, s{sWave}, 11
            s_cmp_eq_u32 s{sS}, 3
            s_cselect_b32 s{sXoff}, {OOB}, s{sXoff}
            """)
        dma((u+3) % 4)
        reads(u, 1, 1)
        p("s_waitcnt lgkmcnt(14)")
        mfmas(0, XF[u])
    p(f"""
    s_add_u32 s{sS}, s{sS}, 1
    s_cmp_lt_u32 s{sS}, 4
    s_cbranch_scc1 {name}_loop
    s_waitcnt lgkmcnt(0)
    """)
    mfmas(1, XF[3] + 4)
    c0 = -2.0*math.sqrt(2.0/math.pi)*LOG2E
    c1 = c0*0.044715
    p(f"""
    s_mov_b32 s40, {f32(c1)}
    s_mov_b32 s41, {f32(c1)}
    v_mov_b32 v{WF[0]}, {f32(c0)}
    v_mov_b32 v{WF[0]+1}, {f32(c0)}
    s_add_u32 s{sT}, s{sH}, 4096
    s_nop 7
    """)
    T = WF[1]
    for t in range(7):
        A = ACC + 16*t
        for i in range(4): p(f"v_pk_mul_f32 {vr(T+2*i,2)}, {vr(A+2*i,2)}, {vr(A+2*i,2)}")
        for i in range(4): p(f"v_pk_fma_f32 {vr(T+2*i,2)}, {vr(T+2*i,2)}, s[40:41], {vr(WF[0],2)}")
        for i in range(4): p(f"v_pk_mul_f32 {vr(T+2*i,2)}, {vr(T+2*i,2)}, {vr(A+2*i,2)}")
        for i in range(8): p(f"v_exp_f32 v{T+i}, v{T+i}")
        for i in range(4): p(f"v_pk_mul_f32 {vr(A+2*i,2)}, {vr(A+2*i,2)}, {vr(A+8+2*i,2)}")
        for i in range(4): p(f"v_pk_add_f32 {vr(T+2*i,2)}, {vr(T+2*i,2)}, 1.0 op_sel_hi:[1,0]")
        for i in range(8): p(f"v_rcp_f32 v{T+i}, v{T+i}")
        p("s_nop 0")
        for i in range(4): p(f"v_pk_mul_f32 {vr(A+2*i,2)}, {vr(A+2*i,2)}, {vr(T+2*i,2)}")
        for i in range(4): p(f"v_cvt_pk_bf16_f32 v{A+8+i}, v{A+2*i}, v{A+2*i+1}")
        so = sH if t < 4 else sT
        p(f"buffer_store_dwordx4 {vr(A+8,4)}, v{vL16}, s[{sWS}:{sWS+3}], s{so} offen offset:{(t%4)*1024}")
    p(f"{name}_end:")
    p("s_endpgm")
    return p.text(), V.next, NS*SLOT, 256

def k_down(name, final):
    p = Prog()
    KT = 32 if final else 112
    NST = KT // 8
    NS = 4
    sWS, sW, sOut = 12, 16, 20
    sWave, sMt, sNt, sT, sT2, sWoff, sM0, sXoff, sS, sB = 24, 25, 26, 27, 28, 29, 30, 31, 32, 33
    V = Alloc(1, 256)
    vL = V("lane"); t0 = V("t0"); t1 = V("t1"); t2 = V("t2"); vL16 = V("l16"); vL16b = V("l16b")
    vW = V("vW", 4); vAw = V("vAw", 2); vG = V("g")
    XF = [V(f"xf{i}", 16, 4) for i in range(NS)]
    WF = [V("wf0", 8, 4), V("wf1", 8, 4)]
    ACC = V("acc", 64, 4)
    BF = V("bf", 8, 4)
    p(f"""
    s_cmp_ge_u32 s2, 256
    s_cbranch_scc1 {name}_end
    s_load_dwordx2 s[{sWS}:{sWS+1}], s[0:1], 80
    s_load_dwordx2 s[{sW}:{sW+1}], s[0:1], {16 if final else 48}
    s_load_dwordx2 s[{sOut}:{sOut+1}], s[0:1], 64
    s_mov_b32 s{sWS+2}, {WS_USED:#x}
    s_mov_b32 s{sWS+3}, 0x20000
    s_mov_b32 s{sW+2}, {KT*16*1024}
    s_mov_b32 s{sW+3}, 0x20000
    s_mov_b32 s{sOut+2}, 0x200000
    s_mov_b32 s{sOut+3}, 0x20000
    """)
    lane_wave(p, vL, t2, sWave)
    p(f"""
    s_and_b32 s{sT}, s2, 7
    s_lshl_b32 s{sMt}, s{sT}, 2
    s_bfe_u32 s{sT}, s2, 0x20003
    s_add_u32 s{sMt}, s{sMt}, s{sT}
    s_lshr_b32 s{sNt}, s2, 5
    v_lshlrev_b32 v{vL16}, 4, v{vL}
    v_add_u32 v{vL16b}, {KT*1024}, v{vL16}
    ; W dma: row = lane/8, chunk = (lane%8) ^ (((row>>1)&1)<<2)
    v_lshrrev_b32 v{t0}, 3, v{vL}
    v_lshlrev_b32 v{t0}, 10, v{t0}
    v_bfe_u32 v{t1}, v{vL}, 4, 1
    v_lshlrev_b32 v{t1}, 2, v{t1}
    v_xor_b32 v{t1}, v{t1}, v{vL}
    v_and_b32 v{t1}, 7, v{t1}
    v_lshl_add_u32 v{vW}, v{t1}, 4, v{t0}
    v_add_u32 v{vW+1}, 7168, v{vW}
    v_add_u32 v{vW+2}, {2*7168}, v{vW}
    v_add_u32 v{vW+3}, {3*7168}, v{vW}
    s_mul_i32 s{sWoff}, s{sWave}, {NST*32*1024}
    s_lshl_b32 s{sT}, s{sNt}, 7
    s_add_u32 s{sWoff}, s{sWoff}, s{sT}
    s_lshl_b32 s{sM0}, s{sWave}, 14
    s_mul_i32 s{sXoff}, s{sMt}, {2*KT*1024}
    s_mul_i32 s{sT}, s{sWave}, {NST*2048}
    s_add_u32 s{sXoff}, s{sXoff}, s{sT}
    s_add_u32 s{sXoff}, s{sXoff}, {WS_O if final else WS_H}
    s_lshl_b32 s{sB}, s2, 13
    s_lshl_b32 s{sT}, s{sWave}, 11
    s_add_u32 s{sB}, s{sB}, s{sT}
    s_add_u32 s{sB}, s{sB}, {WS_B}
    s_waitcnt lgkmcnt(0)
    """)
    def dma(u):
        p(f"""
        s_add_u32 m0, s{sM0}, {u*4096}
        buffer_load_dwordx4 {vr(XF[u],4)}, v{vL16}, s[{sWS}:{sWS+3}], s{sXoff} offen
        buffer_load_dwordx4 v{vW}, s[{sW}:{sW+3}], s{sWoff} offen lds
        buffer_load_dwordx4 v{vW+1}, s[{sW}:{sW+3}], s{sWoff} offen offset:1024 lds
        buffer_load_dwordx4 {vr(XF[u]+4,4)}, v{vL16b}, s[{sWS}:{sWS+3}], s{sXoff} offen
        buffer_load_dwordx4 v{vW+2}, s[{sW}:{sW+3}], s{sWoff} offen offset:2048 lds
        buffer_load_dwordx4 v{vW+3}, s[{sW}:{sW+3}], s{sWoff} offen offset:3072 lds
        buffer_load_dwordx4 {vr(XF[u]+8,4)}, v{vL16}, s[{sWS}:{sWS+3}], s{sXoff} offen offset:1024
        buffer_load_dwordx4 {vr(XF[u]+12,4)}, v{vL16b}, s[{sWS}:{sWS+3}], s{sXoff} offen offset:1024
        s_add_u32 s{sWoff}, s{sWoff}, 32768
        s_add_u32 s{sXoff}, s{sXoff}, 2048
        """)
    npro = NS if final else NS-1
    if final:
        p(f"""
        v_and_b32 v{t0}, 31, v{vL}
        v_lshrrev_b32 v{t1}, 1, v{t2}
        v_lshl_add_u32 v{t0}, v{t1}, 5, v{t0}
        v_lshlrev_b32 v{t1}, 2, v{t0}
        s_lshl_b32 s{sT}, s{sMt}, 8
        s_add_u32 s{sT}, s{sT}, {WS_G}
        """)
    for i in range(npro): dma(i)
    if final:
        p(f"""
        buffer_load_dword v{vG}, v{t1}, s[{sWS}:{sWS+3}], s{sT} offen
        buffer_load_dwordx4 {vr(BF,4)}, v{vL16}, s[{sWS}:{sWS+3}], s{sB} offen
        buffer_load_dwordx4 {vr(BF+4,4)}, v{vL16}, s[{sWS}:{sWS+3}], s{sB} offen offset:1024
        v_lshlrev_b32 v{vL16b}, 10, v{t0}
        v_and_b32 v{t1}, 1, v{t2}
        v_lshl_add_u32 v{vL16b}, v{t1}, 6, v{vL16b}
        v_lshrrev_b32 v{t1}, 5, v{vL}
        v_lshl_add_u32 v{vL16b}, v{t1}, 4, v{vL16b}
        """)
    tr_lane_addr(p, vAw, vL, t0, t1, 1024, 128, 32)
    p(f"""
    v_bfe_u32 v{t0}, v{vL}, 3, 1
    v_lshl_add_u32 v{vAw}, v{t0}, 6, v{vAw}
    v_lshl_add_u32 v{vAw}, v{t2}, 14, v{vAw}
    v_xor_b32 v{vAw+1}, 64, v{vAw}
    """)
    for i in range(64): p(f"v_mov_b32 v{ACC+i}, 0")
    def reads(u, ks, b):
        for t in range(2):
            for ab in range(2):
                p(f"ds_read_b64_tr_b16 {vr(WF[b]+4*t+2*ab,2)}, v{vAw+t} offset:{u*4096 + ks*2048 + ab*512}")
    def mfmas(b, xf):
        for mi in range(2):
            for t in range(2):
                A = ACC + 16*(2*mi+t)
                p(f"{MFMA} {vr(A,16)}, {vr(WF[b]+4*t,4)}, {vr(xf+4*mi,4)}, {vr(A,16)}")
    if final:
        for u in range(4):
            p(f"s_waitcnt vmcnt({8*(3-u)+3})")
            reads(u, 0, 0)
            reads(u, 1, 1)
            p("s_waitcnt lgkmcnt(4)")
            mfmas(0, XF[u])
            p("s_waitcnt lgkmcnt(0)")
            mfmas(1, XF[u]+8)
    else:
        for i in range(8): p(f"v_mov_b32 v{WF[1]+i}, 0")
        for i in range(8): p(f"v_mov_b32 v{XF[3]+8+i}, 0")
        p(f"s_mov_b32 s{sS}, 0")
        p(f"{name}_loop:")
        for u in range(4):
            p(f"s_waitcnt vmcnt({8*(NS-2)}) lgkmcnt(0)")
            reads(u, 0, 0)
            mfmas(1, XF[(u+3) % 4]+8)
            if u == 2:
                p(f"""
                s_cmp_eq_u32 s{sS}, 3
                s_cbranch_scc1 {name}_done
                """)
            if u == 3:
                p(f"""
                s_cmp_eq_u32 s{sS}, 2
                s_cselect_b32 s{sXoff}, {OOB}, s{sXoff}
                s_cselect_b32 s{sWoff}, {OOB}, s{sWoff}
                """)
            dma((u+3) % 4)
            reads(u, 1, 1)
            p("s_waitcnt lgkmcnt(4)")
            mfmas(0, XF[u])
        p(f"""
        s_add_u32 s{sS}, s{sS}, 1
        s_branch {name}_loop
        {name}_done:
        """)
    p(f"""
    s_waitcnt vmcnt(0) lgkmcnt(0)
    s_barrier
    v_lshl_add_u32 v{t0}, v{t2}, 12, v{vL16}
    v_lshl_add_u32 v{t1}, v{t2}, 14, v{vL16}
    s_nop 15
    """)
    for j in range(4):
        for q in range(4):
            p(f"ds_write_b128 v{t0}, {vr(ACC+16*j+4*q,4)} offset:{j*16384 + q*1024}")
    p(f"""
    s_waitcnt lgkmcnt(0)
    s_barrier
    """)
    for w in range(4):
        for q in range(4):
            p(f"ds_read_b128 {vr(ACC+16*w+4*q,4)}, v{t1} offset:{w*4096 + q*1024}")
    p("s_waitcnt lgkmcnt(8)")
    for i in range(8): p(f"v_pk_add_f32 {vr(ACC+2*i,2)}, {vr(ACC+2*i,2)}, {vr(ACC+16+2*i,2)}")
    p("s_waitcnt lgkmcnt(0)")
    for i in range(8): p(f"v_pk_add_f32 {vr(ACC+32+2*i,2)}, {vr(ACC+32+2*i,2)}, {vr(ACC+48+2*i,2)}")
    for i in range(8): p(f"v_pk_add_f32 {vr(ACC+2*i,2)}, {vr(ACC+2*i,2)}, {vr(ACC+32+2*i,2)}")
    if final:
        p(f"""
        v_sub_f32 v{t0}, 1.0, v{vG}
        v_cvt_pk_bf16_f32 v{t0}, v{t0}, v{t0}
        v_lshlrev_b32 v{t0}, 16, v{t0}
        s_lshl_b32 s{sT}, s{sMt}, 16
        s_lshl_b32 s{sT2}, s{sNt}, 7
        s_add_u32 s{sT}, s{sT}, s{sT2}
        """)
        for i in range(8):
            p(f"v_lshlrev_b32 v{ACC+16+2*i}, 16, v{BF+i}")
            p(f"v_and_b32 v{ACC+17+2*i}, 0xffff0000, v{BF+i}")
        for i in range(16):
            p(f"v_mul_f32 v{ACC+i}, v{ACC+i}, v{vG}")
            p(f"v_fmac_f32 v{ACC+i}, v{ACC+16+i}, v{t0}")
        for i in range(8): p(f"v_cvt_pk_bf16_f32 v{ACC+i}, v{ACC+2*i}, v{ACC+2*i+1}")
        p(f"buffer_store_dwordx4 {vr(ACC,4)}, v{vL16b}, s[{sOut}:{sOut+3}], s{sT} offen")
        p(f"buffer_store_dwordx4 {vr(ACC+4,4)}, v{vL16b}, s[{sOut}:{sOut+3}], s{sT} offen offset:32")
    else:
        for i in range(8): p(f"v_cvt_pk_bf16_f32 v{ACC+i}, v{ACC+2*i}, v{ACC+2*i+1}")
        p(f"buffer_store_dwordx4 {vr(ACC,4)}, v{vL16}, s[{sWS}:{sWS+3}], s{sB} offen")
        p(f"buffer_store_dwordx4 {vr(ACC+4,4)}, v{vL16}, s[{sWS}:{sWS+3}], s{sB} offen offset:1024")
    p(f"{name}_end:")
    p("s_endpgm")
    return p.text(), V.next, 65536, 256

def build(path):
    ks = [("qkv_kernel", k_qkv("qkv_kernel")),
          ("up_kernel", k_up("up_kernel")),
          ("attn_kernel", k_attn("attn_kernel")),
          ("down_kernel", k_down("down_kernel", False)),
          ("fin_kernel", k_down("fin_kernel", True))]
    out = "; generated by gen1.py\n"
    for n, (txt, nv, lds, blk) in ks:
        out += f"; @launch kernel={n} grid=(256,1,1) block=({blk},1,1) lds={lds}\n"
    out += '.amdgcn_target "amdgcn-amd-amdhsa--gfx950"\n.text\n'
    for n, (txt, nv, lds, blk) in ks:
        out += kernel_header(n) + txt
    out += '.section .rodata,"a"\n'
    for n, (txt, nv, lds, blk) in ks:
        out += ".p2align 6\n" + kernel_desc(n, nv)
        print(n, "vgprs", nv, "lds", lds, "lines", txt.count("\n"), file=sys.stderr)
    open(path, "w").write(out)

if __name__ == "__main__":
    build(sys.argv[1] if len(sys.argv) > 1 else f"cdna_kernels/{NAME}.s")
```

```python
import sys, math, os, struct
from asmlib import *

NAME = "gated_mix__softmax_full_mha__geglu_ffn__prompt"
WS_Q  = 0
WS_KV = 2 << 20
WS_H  = 8 << 20
WS_O  = 16 << 20
WS_B  = 18 << 20
WS_G  = 20 << 20
WS_FL = (20 << 20) + 0x10000
WS_ST = (20 << 20) + 0x80000
WS_USED = 22 << 20
OOB = 0x40000000
LOG2E = 1.4426950408889634
def f32(x): return "0x%08x" % struct.unpack("<I", struct.pack("<f", x))[0]
STAMP = int(os.environ.get("STAMP", "0"))
MFMA = "v_mfma_f32_32x32x16_bf16"
SMF = "v_smfmac_f32_32x32x32_bf16"
LDS_WG = 81920

sID = 3
sWS = 4
sWave = 8
sT, sT2, sT3 = 9, 10, 11
vL, vWv, vL16, t0, t1 = 1, 2, 3, 4, 5
VB = 6

def stamp(p, i):
    if STAMP:
        p(f"s_memrealtime s[{64+2*i}:{65+2*i}]")
        p(f"s_memtime s[{80+2*i}:{81+2*i}]")
        p("s_waitcnt lgkmcnt(0)")
def stamp_out(p, kid, n=5):
    if STAMP:
        p("s_waitcnt vmcnt(0)")
        stamp(p, n-1)
        p(f"""
        s_lshl_b32 s60, s{sID}, 3
        s_add_u32 s60, s60, s{sWave}
        s_lshl_b32 s60, s60, 6
        s_add_u32 s60, s60, {WS_ST + kid*131072}
        v_mov_b32 v{t0}, 0
        s_mov_b64 exec, 1
        """)
        for i in range(n):
            p(f"v_mov_b32 v{t1}, s{64+2*i}")
            p(f"buffer_store_dword v{t1}, v{t0}, s[{sWS}:{sWS+3}], s60 offen offset:{4*i}")
            p(f"v_mov_b32 v{t1}, s{80+2*i}")
            p(f"buffer_store_dword v{t1}, v{t0}, s[{sWS}:{sWS+3}], s60 offen offset:{32+4*i}")
        p("s_mov_b64 exec, -1")

def common(p):
    p(f"""
    s_load_dwordx2 s[{sWS}:{sWS+1}], s[0:1], 80
    v_and_b32 v{vL}, 63, v0
    v_lshrrev_b32 v{vWv}, 6, v0
    s_mov_b32 s{sWS+2}, {WS_USED:#x}
    v_readfirstlane_b32 s{sWave}, v{vWv}
    s_mov_b32 s{sWS+3}, 0x20000
    v_lshlrev_b32 v{vL16}, 4, v{vL}
    """)
    if C.fused: ldsrd(p, sDbg, 72, 256)
def ldsrd(p, d, off, nbytes):
    p(f"""
    s_load_dwordx2 s[{d}:{d+1}], s[0:1], {off}
    s_mov_b32 s{d+2}, {nbytes:#x}
    s_mov_b32 s{d+3}, 0x20000
    """)
def tr_lane_addr(p, vd, hstride, rowbytes, nhbytes):
    p(f"""
    v_lshrrev_b32 v{t0}, 5, v{vL}
    v_mul_u32_u24 v{vd}, {hstride}, v{t0}
    v_bfe_u32 v{t0}, v{vL}, 2, 2
    v_mul_u32_u24 v{t0}, {rowbytes}, v{t0}
    v_bfe_u32 v{t1}, v{vL}, 4, 1
    v_mul_u32_u24 v{t1}, {nhbytes}, v{t1}
    v_add3_u32 v{vd}, v{vd}, v{t0}, v{t1}
    v_and_b32 v{t0}, 1, v{vL}
    v_and_b32 v{t1}, 2, v{vL}
    v_lshl_add_u32 v{vd}, v{t0}, 4, v{vd}
    v_lshl_add_u32 v{vd}, v{t1}, 2, v{vd}
    """)
def xfrag_addr(p, vd):
    p(f"""
    v_and_b32 v{t0}, 31, v{vL}
    v_lshlrev_b32 v{vd}, 7, v{t0}
    v_bfe_u32 v{t0}, v{vL}, 1, 3
    v_lshrrev_b32 v{t1}, 5, v{vL}
    v_xor_b32 v{t0}, v{t0}, v{t1}
    v_lshl_add_u32 v{vd}, v{t0}, 4, v{vd}
    """)

def lines(fn, *a):
    q = Prog(); fn(q, *a); return [l.strip() for l in q.lines]
def chunks(ls):
    out, cur = [], []
    for l in ls:
        cur.append(l)
        if l.startswith("buffer_"):
            out.append(cur); cur = []
    if cur: out[-1] = out[-1] + cur
    return out
def weave(p, mf, *streams):
    n = len(mf)
    after = [[] for _ in range(n)]
    for first, last, items in streams:
        k = len(items); span = last - first + 1
        for i, it in enumerate(items):
            after[first + (i*span)//k] += [it] if isinstance(it, str) else list(it)
    for i in range(n):
        p(mf[i])
        for l in after[i]: p(l)

class Cfg:
    sc = ""
    fused = False
    tail = False
    prio = 0
C = Cfg()
sDbg = 44
sTag = 48
sCnt = 49
vTag = 255
FQ, FO, FH = WS_FL, WS_FL + 1024, WS_FL + 2048
SPIN_MAX = 1 << 17

def tag_prefetch(p):
    if C.fused:
        p(f"v_mov_b32 v{vTag}, 0")
        p(f"buffer_load_dword v{vTag}, v{vTag}, s[{sDbg}:{sDbg+3}], 0 offen sc1")
def tag_get(p, L):
    p(f"""
    s_mov_b32 s{sCnt}, 0
    {L}_tg:
    v_readfirstlane_b32 s{sTag}, v{vTag}
    s_add_u32 s{sCnt}, s{sCnt}, 1
    s_cmp_lg_u32 s{sTag}, 0
    s_cbranch_scc1 {L}_tgd
    s_cmp_gt_u32 s{sCnt}, {SPIN_MAX}
    s_cbranch_scc1 {L}_tgd
    s_sleep 4
    v_mov_b32 v{vTag}, 0
    buffer_load_dword v{vTag}, v{vTag}, s[{sDbg}:{sDbg+3}], 0 offen sc1
    s_waitcnt vmcnt(0)
    s_branch {L}_tg
    {L}_tgd:
    """)
def signal(p, L, sOff, need_tag):
    p(f"""
    s_waitcnt vmcnt(0)
    s_barrier
    s_cmp_lg_u32 s{sWave}, 0
    s_cbranch_scc1 {L}_sg
    """)
    if need_tag: tag_get(p, L)
    p(f"""
    v_mov_b32 v{t0}, 0
    v_mov_b32 v{t1}, s{sTag}
    s_mov_b64 exec, 1
    buffer_store_dword v{t1}, v{t0}, s[{sWS}:{sWS+3}], s{sOff} offen sc1
    s_mov_b64 exec, -1
    {L}_sg:
    """)
def wait_flags(p, L, sOff, n):
    p(f"""
    s_cmp_lg_u32 s{sWave}, 0
    s_cbranch_scc1 {L}_wd
    v_min_u32 v{t0}, {n-1}, v{vL}
    v_lshlrev_b32 v{t0}, 2, v{t0}
    s_mov_b32 s{sCnt}, 0
    {L}_wl:
    buffer_load_dword v{t1}, v{t0}, s[{sWS}:{sWS+3}], s{sOff} offen sc1
    s_add_u32 s{sCnt}, s{sCnt}, 1
    s_waitcnt vmcnt(0)
    v_cmp_ne_u32 vcc, s{sTag}, v{t1}
    s_cmp_gt_u32 s{sCnt}, {SPIN_MAX}
    s_cbranch_scc1 {L}_wd
    s_cbranch_vccz {L}_wd
    s_sleep 1
    s_branch {L}_wl
    {L}_wd:
    s_barrier
    """)
def tag_publish(p, L):
    F = 8
    p(f"""
    s_mov_b32 s{sT}, {WS_FL}
    s_waitcnt lgkmcnt(0)
    buffer_load_dwordx4 {vr(F,4)}, v{vL16}, s[{sWS}:{sWS+3}], s{sT} offen sc1
    buffer_load_dwordx4 {vr(F+4,4)}, v{vL16}, s[{sWS}:{sWS+3}], s{sT} offen offset:1024 sc1
    buffer_load_dwordx4 {vr(F+8,4)}, v{vL16}, s[{sWS}:{sWS+3}], s{sT} offen offset:2048 sc1
    s_waitcnt vmcnt(0)
    v_readfirstlane_b32 s{sTag}, v{F}
    {L}_tp:
    s_add_u32 s{sTag}, s{sTag}, 1
    s_cmp_eq_u32 s{sTag}, 0
    s_cbranch_scc1 {L}_tp
    s_mov_b64 s[50:51], 0
    """)
    for i in range(12):
        p(f"v_cmp_eq_u32 vcc, s{sTag}, v{F+i}")
        p(f"s_or_b64 s[50:51], s[50:51], vcc")
    p(f"""
    s_cmp_lg_u64 s[50:51], 0
    s_cbranch_scc1 {L}_tp
    v_mov_b32 v{t0}, 0
    v_mov_b32 v{vTag}, s{sTag}
    s_mov_b64 exec, 1
    buffer_store_dword v{vTag}, v{t0}, s[{sDbg}:{sDbg+3}], 0 offen sc1
    s_mov_b64 exec, -1
    """)

def qkv(p, L):
    sX, sW = 12, 16
    sMt, sHg, sXb, sWb, sU, sXo, sWo, sI, sMx, sMw = 20, 21, 22, 23, 24, 25, 26, 27, 28, 29
    V = Alloc(VB, 255)
    vX = V("vX"); vW = V("vW"); vAx = V("vAx", 4); vAw = V("vAw")
    XF = [V("xf0", 4, 4), V("xf1", 4, 4)]
    WF = [V("wf0", 12, 4), V("wf1", 12, 4)]
    ACC = V("acc", 48, 4)
    XR = 49152
    stamp(p, 0)
    ldsrd(p, sX, 0, 0x200000)
    ldsrd(p, sW, 8, 0x180000)
    p(f"""
    s_and_b32 s{sT}, s{sID}, 3
    s_lshl_b32 s{sMt}, s{sT}, 3
    s_bfe_u32 s{sT}, s{sID}, 0x30003
    s_add_u32 s{sMt}, s{sMt}, s{sT}
    s_and_b32 s{sHg}, s{sID}, 4
    s_lshr_b32 s{sT2}, s{sID}, 6
    s_add_u32 s{sHg}, s{sHg}, s{sT2}
    s_lshl_b32 s{sT2}, s{sT2}, 1
    s_add_u32 s{sU}, s{sT}, s{sT2}
    s_lshl_b32 s{sU}, s{sU}, 1
    s_lshl_b32 s{sXb}, s{sMt}, 16
    s_lshl_b32 s{sWb}, s{sHg}, 7
    v_lshrrev_b32 v{t0}, 3, v0
    v_lshlrev_b32 v{vX}, 10, v{t0}
    v_mul_u32_u24 v{vW}, 3072, v{t0}
    v_lshrrev_b32 v{t0}, 4, v0
    v_xor_b32 v{t1}, v{t0}, v{vL}
    v_and_b32 v{t1}, 7, v{t1}
    v_lshl_add_u32 v{vX}, v{t1}, 4, v{vX}
    v_lshlrev_b32 v{t0}, 2, v{t0}
    v_xor_b32 v{t1}, v{t0}, v{vL}
    v_and_b32 v{t1}, 7, v{t1}
    v_lshl_add_u32 v{vW}, v{t1}, 4, v{vW}
    s_lshl_b32 s{sMx}, s{sWave}, 10
    s_add_u32 s{sMx}, s{sMx}, {XR}
    s_mul_i32 s{sMw}, s{sWave}, 3072
    s_mov_b32 s{sI}, 0
    s_bfe_u32 s{sT}, s{sU}, 0x30001
    s_lshl_b32 s{sT}, s{sT}, 7
    s_add_u32 s{sXo}, s{sXb}, s{sT}
    s_mov_b32 m0, s{sMx}
    s_waitcnt lgkmcnt(0)
    """)
    stamp(p, 1)
    p(f"buffer_load_dwordx4 v{vX}, s[{sX}:{sX+3}], s{sXo} offen lds")
    def group(p, par, wslot):
        p(f"""
        s_and_b32 s{sT}, s{sU}, 15
        s_mul_i32 s{sWo}, s{sT}, {32*3072}
        s_add_u32 m0, s{sMw}, {wslot*12288}
        s_add_u32 s{sWo}, s{sWo}, s{sWb}
        buffer_load_dwordx4 v{vW}, s[{sW}:{sW+3}], s{sWo} offen lds
        buffer_load_dwordx4 v{vW}, s[{sW}:{sW+3}], s{sWo} offen offset:1024 lds
        buffer_load_dwordx4 v{vW}, s[{sW}:{sW+3}], s{sWo} offen offset:2048 lds
        s_add_u32 s{sU}, s{sU}, 1
        s_add_u32 s{sI}, s{sI}, 1
        s_bfe_u32 s{sT}, s{sU}, 0x30001
        s_lshl_b32 s{sT}, s{sT}, 7
        s_add_u32 s{sXo}, s{sXb}, s{sT}
        """)
        p(f"""
        s_and_b32 s{sT}, s{sI}, 7
        s_lshl_b32 s{sT}, s{sT}, 12
        s_add_u32 m0, s{sMx}, s{sT}
        """)
        if par == 0:
            p(f"s_add_u32 s{sXo}, s{sXo}, 32768")
        else:
            p(f"""
            s_cmp_eq_u32 s{sI}, 16
            s_cselect_b32 s{sXb}, {OOB}, s{sXb}
            s_cselect_b32 s{sXo}, {OOB}, s{sXo}
            s_cselect_b32 s{sWb}, {OOB}, s{sWb}
            """)
        p(f"buffer_load_dwordx4 v{vX}, s[{sX}:{sX+3}], s{sXo} offen lds")
    group(p, 0, 0); group(p, 1, 1); group(p, 0, 2)
    xfrag_addr(p, vAx)
    p(f"""
    v_lshrrev_b32 v{t0}, 1, v{vWv}
    v_lshl_add_u32 v{vAx}, v{t0}, 12, v{vAx}
    v_add_u32 v{vAx}, {XR}, v{vAx}
    v_xor_b32 v{vAx+1}, 32, v{vAx}
    v_xor_b32 v{vAx+2}, 64, v{vAx}
    v_xor_b32 v{vAx+3}, 96, v{vAx}
    """)
    tr_lane_addr(p, vAw, 3072, 128, 32)
    p(f"""
    v_lshrrev_b32 v{t0}, 3, v{vL}
    v_xor_b32 v{t0}, v{t0}, v{vWv}
    v_and_b32 v{t0}, 1, v{t0}
    v_lshl_add_u32 v{vAw}, v{t0}, 6, v{vAw}
    """)
    for i in range(48): p(f"v_mov_b32 v{ACC+i}, 0")
    for i in range(4): p(f"v_mov_b32 v{XF[1]+i}, 0")
    for i in range(12): p(f"v_mov_b32 v{WF[1]+i}, 0")
    def reads(p, u, ks, b):
        p(f"ds_read_b128 {vr(XF[b],4)}, v{vAx + 2*(u%2) + ks} offset:{(u//2)*8192}")
        for t in range(3):
            for ab in range(2):
                p(f"ds_read_b64_tr_b16 {vr(WF[b]+4*t+2*ab,2)}, v{vAw} offset:{u*12288 + ks*6144 + t*1024 + ab*512}")
    def mfmas(p, b):
        p(f"{MFMA} {vr(ACC,16)}, {vr(WF[b],4)}, {vr(XF[b],4)}, {vr(ACC,16)}")
        p(f"{MFMA} {vr(ACC+16,16)}, {vr(WF[b]+4,4)}, {vr(XF[b],4)}, {vr(ACC+16,16)}")
        p(f"{MFMA} {vr(ACC+32,16)}, {vr(XF[b],4)}, {vr(WF[b]+8,4)}, {vr(ACC+32,16)}")
    if STAMP:
        p("s_waitcnt vmcnt(8)")
        stamp(p, 2)
    p(f"{L}_loop:")
    for u in range(4):
        p("s_waitcnt vmcnt(8) lgkmcnt(0)")
        p("s_barrier")
        g = chunks(lines(group, (u+3) % 2, (u+3) % 4))
        r0 = lines(reads, u, 0, 0); r1 = lines(reads, u, 1, 1)
        for l in r0[:3]: p(l)
        weave(p, lines(mfmas, 1), (0, 1, r0[3:]), (0, 2, g[:2] + [["s_waitcnt lgkmcnt(0)"]]))
        weave(p, lines(mfmas, 0), (0, 2, r1), (0, 1, g[2:]))
    for i in range(4): p(f"v_xor_b32 v{vAx+i}, {49152 ^ 65536}, v{vAx+i}")
    p(f"""
    s_cmp_lt_u32 s{sI}, 19
    s_cbranch_scc1 {L}_loop
    s_waitcnt lgkmcnt(0)
    """)
    mfmas(p, 1)
    stamp(p, 3)
    tag_prefetch(p)
    sQ, sKV = 20, 22
    vKo, vVo = vX, vW
    p(f"""
    s_lshl_b32 s26, s{sHg}, 5
    s_add_u32 s26, s26, s{sMt}
    s_lshl_b32 s26, s26, 2
    s_add_u32 s26, s26, {FQ}
    s_lshl_b32 s{sT}, s{sMt}, 1
    s_lshr_b32 s{sT2}, s{sWave}, 1
    s_add_u32 s{sT}, s{sT}, s{sT2}
    s_lshl_b32 s{sT2}, s{sHg}, 8
    s_add_u32 s{sT}, s{sT}, s{sT2}
    s_and_b32 s{sT2}, s{sWave}, 1
    s_lshl_b32 s{sT2}, s{sT2}, 7
    s_add_u32 s{sT}, s{sT}, s{sT2}
    s_lshl_b32 s{sQ}, s{sT}, 10
    s_lshl_b32 s{sKV}, s{sT}, 11
    s_add_u32 s{sKV}, s{sKV}, {WS_KV}
    s_mov_b32 s24, {f32(0.25*LOG2E)}
    s_mov_b32 s25, {f32(0.25*LOG2E)}
    v_and_b32 v{t0}, 0x33, v{vL}
    v_and_b32 v{t1}, 4, v{vL}
    v_lshl_or_b32 v{t0}, v{t1}, 1, v{t0}
    v_and_b32 v{t1}, 8, v{vL}
    v_lshrrev_b32 v{t1}, 1, v{t1}
    v_or_b32 v{t0}, v{t0}, v{t1}
    v_lshlrev_b32 v{vKo}, 4, v{t0}
    v_and_b32 v{t1}, 15, v{vL}
    v_lshlrev_b32 v{vVo}, 4, v{t1}
    v_bfe_u32 v{t0}, v{vL}, 4, 1
    v_lshl_add_u32 v{vVo}, v{t0}, 17, v{vVo}
    v_lshrrev_b32 v{t0}, 5, v{vL}
    v_lshl_add_u32 v{vVo}, v{t0}, 8, v{vVo}
    s_add_u32 s{sT}, s{sQ}, 65536
    s_add_u32 s{sT2}, s{sKV}, 131072
    """)
    for t in (1, 2, 0):
        if t == 0:
            for i in range(8): p(f"v_pk_mul_f32 {vr(ACC+2*i,2)}, {vr(ACC+2*i,2)}, s[24:25]")
        for i in range(8):
            p(f"v_cvt_pk_bf16_f32 v{ACC+16*t+i}, v{ACC+16*t+2*i}, v{ACC+16*t+2*i+1}")
        if t == 0:
            p(f"buffer_store_dwordx4 {vr(ACC,4)}, v{vL16}, s[{sWS}:{sWS+3}], s{sQ} offen{C.sc}")
            p(f"buffer_store_dwordx4 {vr(ACC+4,4)}, v{vL16}, s[{sWS}:{sWS+3}], s{sT} offen{C.sc}")
        elif t == 1:
            p(f"buffer_store_dwordx4 {vr(ACC+16,4)}, v{vKo}, s[{sWS}:{sWS+3}], s{sKV} offen{C.sc}")
            p(f"buffer_store_dwordx4 {vr(ACC+20,4)}, v{vKo}, s[{sWS}:{sWS+3}], s{sT2} offen{C.sc}")
        else:
            p(f"buffer_store_dwordx4 {vr(ACC+32,4)}, v{vVo}, s[{sWS}:{sWS+3}], s{sKV} offen offset:1024{C.sc}")
            p(f"buffer_store_dwordx4 {vr(ACC+36,4)}, v{vVo}, s[{sWS}:{sWS+3}], s{sKV} offen offset:1536{C.sc}")
    if C.fused: signal(p, L, 26, True)
    stamp_out(p, 0)
    return V.next

def gate(p, L):
    sX, sG = 12, 40
    sI, sXo, sGo = 37, 38, 39
    V = Alloc(VB, 255)
    vA = V("a"); GW = V("gw", 4, 4); GX = V("gx", 8, 4)
    ldsrd(p, sG, 56, 1024)
    p(f"""
    s_lshl_b32 s{sXo}, s{sT3}, 2
    s_add_u32 s{sXo}, s{sXo}, s{sWave}
    s_lshl_b32 s{sGo}, s{sXo}, 4
    s_add_u32 s{sGo}, s{sGo}, {WS_G}
    s_lshl_b32 s{sXo}, s{sXo}, 12
    v_lshrrev_b32 v{vA}, 5, v{vL}
    v_lshlrev_b32 v{vA}, 2, v{vA}
    s_waitcnt lgkmcnt(0)
    buffer_load_dwordx4 {vr(GW,4)}, v{vL16}, s[{sG}:{sG+3}], 0 offen
    s_mov_b32 s{sI}, 0
    {L}_loop:
    buffer_load_dwordx4 {vr(GX,4)}, v{vL16}, s[{sX}:{sX+3}], s{sXo} offen
    buffer_load_dwordx4 {vr(GX+4,4)}, v{vL16}, s[{sX}:{sX+3}], s{sXo} offen offset:1024
    s_add_u32 s{sXo}, s{sXo}, 2048
    s_waitcnt vmcnt(0)
    v_dot2_f32_bf16 v{t0}, v{GX}, v{GW}, 0
    v_dot2_f32_bf16 v{t1}, v{GX+4}, v{GW}, 0
    """)
    for i in range(1, 4):
        p(f"v_dot2_f32_bf16 v{t0}, v{GX+i}, v{GW+i}, v{t0}")
        p(f"v_dot2_f32_bf16 v{t1}, v{GX+4+i}, v{GW+i}, v{t1}")
    p(f"""
    s_nop 3
    v_permlane32_swap_b32 v{t0}, v{t1}
    s_nop 1
    v_add_f32 v{t0}, v{t0}, v{t1}
    s_nop 1
    v_add_f32_dpp v{t0}, v{t0}, v{t0} row_ror:8 row_mask:0xf bank_mask:0xf
    s_nop 1
    v_add_f32_dpp v{t0}, v{t0}, v{t0} row_ror:4 row_mask:0xf bank_mask:0xf
    s_nop 1
    v_add_f32_dpp v{t0}, v{t0}, v{t0} row_ror:2 row_mask:0xf bank_mask:0xf
    s_nop 1
    v_add_f32_dpp v{t0}, v{t0}, v{t0} row_ror:1 row_mask:0xf bank_mask:0xf
    v_mov_b32 v{t1}, v{t0}
    s_nop 1
    v_permlane16_swap_b32 v{t0}, v{t1}
    s_nop 1
    v_add_f32 v{t0}, v{t0}, v{t1}
    v_cvt_pk_bf16_f32 v{t0}, v{t0}, v{t0}
    v_lshlrev_b32 v{t0}, 16, v{t0}
    v_mul_f32 v{t0}, {f32(-LOG2E)}, v{t0}
    v_exp_f32 v{t0}, v{t0}
    s_nop 0
    v_add_f32 v{t0}, 1.0, v{t0}
    v_rcp_f32 v{t0}, v{t0}
    s_nop 0
    v_cvt_pk_bf16_f32 v{t0}, v{t0}, v{t0}
    v_lshlrev_b32 v{t0}, 16, v{t0}
    buffer_store_dword v{t0}, v{vA}, s[{sWS}:{sWS+3}], s{sGo} offen{C.sc}
    s_add_u32 s{sGo}, s{sGo}, 8
    s_add_u32 s{sI}, s{sI}, 1
    s_cmp_lt_u32 s{sI}, 2
    s_cbranch_scc1 {L}_loop
    """)
    return V.next

def up(p, L):
    sX, sWg, sWu = 12, 16, 20
    sMt, sFt, sXb, sWb, sU, sXo, sWo, sI, sMx, sMw, sWs, sRd, sH = 24, 25, 26, 27, 28, 29, 30, 31, 32, 33, 34, 35, 36
    V = Alloc(VB, 255)
    vX = V("vX", 2); vW = V("vW", 4); vAx = V("vAx", 4); vAw0 = V("vAw0"); vAw = V("vAw", 4)
    XF = V("xf", 32, 4)
    WF = [V("wf0", 16, 4), V("wf1", 16, 4)]
    ACC = V("acc", 128, 4)
    XR = 49152
    p(f"""
    s_lshr_b32 s{sT2}, s{sID}, 3
    s_cmp_lt_u32 s{sT2}, 28
    s_cbranch_scc1 {L}_main
    """)
    if C.fused:
        p(f"""
        s_cmp_lg_u32 s{sWave}, 0
        s_cbranch_scc1 {L}_done
        s_waitcnt lgkmcnt(0)
        v_mov_b32 v{vTag}, 0
        s_cmp_lg_u32 s{sID}, 224
        s_cbranch_scc1 {L}_np
        """)
        tag_publish(p, L)
        p(f"{L}_np:")
        p("s_nop 0")
        tag_get(p, L + "_i")
    p(f"""
    s_branch {L}_done
    {L}_main:
    """)
    stamp(p, 0)
    ldsrd(p, sX, 0, 0x200000)
    ldsrd(p, sWg, 32, 512*3584)
    ldsrd(p, sWu, 40, 512*3584)
    p(f"""
    s_and_b32 s{sT}, s{sID}, 3
    s_lshl_b32 s{sMt}, s{sT}, 2
    s_and_b32 s{sT}, s{sT2}, 3
    s_add_u32 s{sMt}, s{sMt}, s{sT}
    s_bfe_u32 s{sFt}, s{sID}, 0x10002
    s_mul_i32 s{sFt}, s{sFt}, 7
    s_lshr_b32 s{sT2}, s{sT2}, 2
    s_add_u32 s{sFt}, s{sFt}, s{sT2}
    s_lshl_b32 s{sT}, s{sT}, 1
    s_add_u32 s{sU}, s{sT}, s{sT2}
    s_lshl_b32 s{sU}, s{sU}, 1
    s_lshl_b32 s{sXb}, s{sMt}, 17
    s_lshl_b32 s{sWb}, s{sFt}, 8
    s_cmp_ge_u32 s{sFt}, 8
    s_cbranch_scc1 {L}_ng
    s_lshl_b32 s{sT3}, s{sMt}, 3
    s_add_u32 s{sT3}, s{sT3}, s{sFt}
    """)
    ng = gate(p, L + "_g")
    p(f"""
    s_waitcnt vmcnt(0)
    {L}_ng:
    v_lshrrev_b32 v{t0}, 3, v{vL}
    v_lshl_add_u32 v{t0}, v{vWv}, 4, v{t0}
    v_lshlrev_b32 v{vX}, 10, v{t0}
    v_lshrrev_b32 v{t0}, 4, v{vL}
    v_xor_b32 v{t1}, v{t0}, v{vL}
    v_and_b32 v{t1}, 7, v{t1}
    v_lshl_add_u32 v{vX}, v{t1}, 4, v{vX}
    v_xor_b32 v{vX+1}, 64, v{vX}
    v_add_u32 v{vX+1}, 7168, v{vX+1}
    ; W dma: row = 8w + 4jj + lane/16 ; chunk = (lane%16) ^ ((2*(lane/16)+region)<<1)
    v_lshl_add_u32 v{t1}, v{vWv}, 3, v{t0}
    v_mul_u32_u24 v{vW}, 3584, v{t1}
    v_lshlrev_b32 v{t0}, 2, v{t0}
    v_xor_b32 v{t1}, v{t0}, v{vL}
    v_and_b32 v{t1}, 15, v{t1}
    v_lshl_add_u32 v{vW}, v{t1}, 4, v{vW}
    v_add_u32 v{vW+1}, {4*3584-1024}, v{vW}
    v_xor_b32 v{vW+2}, 32, v{vW}
    v_xor_b32 v{vW+3}, 32, v{vW+1}
    s_lshl_b32 s{sMw}, s{sWave}, 11
    s_add_u32 s{sMx}, s{sMw}, {XR}
    s_mov_b32 s{sWs}, s{sMw}
    s_mov_b32 s{sI}, 0
    s_bfe_u32 s{sT}, s{sU}, 0x30001
    s_lshl_b32 s{sT}, s{sT}, 7
    s_add_u32 s{sXo}, s{sXb}, s{sT}
    s_mov_b32 m0, s{sMx}
    s_waitcnt lgkmcnt(0)
    """)
    stamp(p, 1)
    p(f"buffer_load_dwordx4 v{vX}, s[{sX}:{sX+3}], s{sXo} offen lds")
    p(f"buffer_load_dwordx4 v{vX+1}, s[{sX}:{sX+3}], s{sXo} offen offset:1024 lds")
    def group(p, par):
        p(f"""
        s_and_b32 s{sT}, s{sU}, 15
        s_mul_i32 s{sWo}, s{sT}, {32*3584}
        s_mov_b32 m0, s{sWs}
        s_add_u32 s{sWo}, s{sWo}, s{sWb}
        buffer_load_dwordx4 v{vW}, s[{sWg}:{sWg+3}], s{sWo} offen lds
        buffer_load_dwordx4 v{vW+1}, s[{sWg}:{sWg+3}], s{sWo} offen offset:1024 lds
        s_add_u32 m0, s{sWs}, 8192
        s_add_u32 s{sU}, s{sU}, 1
        buffer_load_dwordx4 v{vW+2}, s[{sWu}:{sWu+3}], s{sWo} offen lds
        buffer_load_dwordx4 v{vW+3}, s[{sWu}:{sWu+3}], s{sWo} offen offset:1024 lds
        s_add_u32 s{sI}, s{sI}, 1
        s_add_u32 s{sWs}, s{sWs}, 16384
        s_cmp_ge_u32 s{sWs}, {XR}
        s_cselect_b32 s{sWs}, s{sMw}, s{sWs}
        s_bfe_u32 s{sT}, s{sU}, 0x30001
        s_lshl_b32 s{sT}, s{sT}, 7
        s_add_u32 s{sXo}, s{sXb}, s{sT}
        s_and_b32 s{sT}, s{sI}, 3
        s_lshl_b32 s{sT}, s{sT}, 13
        s_add_u32 m0, s{sMx}, s{sT}
        """)
        if par == 0:
            p(f"s_add_u32 s{sXo}, s{sXo}, 65536")
        else:
            p(f"""
            s_cmp_eq_u32 s{sI}, 16
            s_cselect_b32 s{sXb}, {OOB}, s{sXb}
            s_cselect_b32 s{sXo}, {OOB}, s{sXo}
            s_cselect_b32 s{sWb}, {OOB}, s{sWb}
            """)
        p(f"buffer_load_dwordx4 v{vX}, s[{sX}:{sX+3}], s{sXo} offen lds")
        p(f"buffer_load_dwordx4 v{vX+1}, s[{sX}:{sX+3}], s{sXo} offen offset:1024 lds")
    group(p, 0); group(p, 1)
    xfrag_addr(p, vAx)
    p(f"""
    v_lshrrev_b32 v{t0}, 1, v{vWv}
    v_lshl_add_u32 v{vAx}, v{t0}, 13, v{vAx}
    v_add_u32 v{vAx}, {XR}, v{vAx}
    v_xor_b32 v{vAx+1}, 32, v{vAx}
    v_xor_b32 v{vAx+2}, 64, v{vAx}
    v_xor_b32 v{vAx+3}, 96, v{vAx}
    """)
    tr_lane_addr(p, vAw0, 2048, 256, 8192)
    p(f"""
    v_bfe_u32 v{t0}, v{vL}, 2, 2
    v_bfe_u32 v{t1}, v{vL}, 4, 1
    v_lshl_or_b32 v{t0}, v{t0}, 1, v{t1}
    v_and_b32 v{t1}, 1, v{vWv}
    v_lshlrev_b32 v{t1}, 2, v{t1}
    v_xor_b32 v{t0}, v{t0}, v{t1}
    v_lshl_add_u32 v{vAw0}, v{t0}, 5, v{vAw0}
    s_mov_b32 s{sRd}, 0
    s_lshl_b32 s{sT}, s{sMt}, 2
    s_and_b32 s{sT2}, s{sWave}, 2
    s_add_u32 s{sT}, s{sT}, s{sT2}
    s_mul_i32 s{sH}, s{sT}, 112
    s_lshl_b32 s{sT}, s{sFt}, 3
    s_add_u32 s{sH}, s{sH}, s{sT}
    s_and_b32 s{sT}, s{sWave}, 1
    s_lshl_b32 s{sT}, s{sT}, 2
    s_add_u32 s{sH}, s{sH}, s{sT}
    s_lshl_b32 s{sH}, s{sH}, 10
    s_add_u32 s{sH}, s{sH}, {WS_H}
    """)
    for i in range(128): p(f"v_mov_b32 v{ACC+i}, 0")
    for i in range(16): p(f"v_mov_b32 v{WF[1]+i}, 0")
    for i in range(8): p(f"v_mov_b32 v{XF+24+i}, 0")
    def xreads(p, ks):
        for mi in range(2):
            p(f"ds_read_b128 {vr(XF+8*ks+4*mi,4)}, v{vAx+ks} offset:{mi*4096}")
    def wreads(p, ks, b):
        for tt in range(4):
            for ab in range(2):
                p(f"ds_read_b64_tr_b16 {vr(WF[b]+4*tt+2*ab,2)}, v{vAw+tt} offset:{ks*4096 + ab*1024}")
    def mfmas(p, b, ks4):
        for tt in range(4):
            for mi in range(2):
                A = ACC + 64*mi + 16*tt
                p(f"{MFMA} {vr(A,16)}, {vr(WF[b]+4*tt,4)}, {vr(XF+8*ks4+4*mi,4)}, {vr(A,16)}")
    if STAMP:
        p("s_waitcnt vmcnt(6)")
        stamp(p, 2)
    if C.prio: p("s_setprio 0")
    p(f"{L}_loop:")
    for par in range(2):
        p(f"v_add_u32 v{vAw}, s{sRd}, v{vAw0}")
        for tt in range(1, 4): p(f"v_xor_b32 v{vAw+tt}, {32*tt}, v{vAw}")
        p(f"""
        s_add_u32 s{sRd}, s{sRd}, 16384
        s_cmp_eq_u32 s{sRd}, {XR}
        s_cselect_b32 s{sRd}, 0, s{sRd}
        s_waitcnt vmcnt(6) lgkmcnt(0)
        s_barrier
        """)
        g = chunks(lines(group, par))
        r0 = (lines(xreads, 0) if par == 0 else []) + lines(wreads, 0, 0)
        r1 = lines(wreads, 1, 1) + (lines(xreads, 1) + lines(xreads, 2) + lines(xreads, 3) if par == 0 else [])
        weave(p, lines(mfmas, 1, 3 if par == 0 else 1), (0, 4, r0), (1, 6, g[:3]), (7, 7, ["s_waitcnt lgkmcnt(0)"]))
        weave(p, lines(mfmas, 0, 2*par), (0, 6, r1), (1, 6, g[3:]))
    for i in range(4): p(f"v_xor_b32 v{vAx+i}, {49152 ^ 65536}, v{vAx+i}")
    p(f"""
    s_cmp_lt_u32 s{sI}, 18
    s_cbranch_scc1 {L}_loop
    s_waitcnt lgkmcnt(0)
    """)
    mfmas(p, 1, 3)
    if C.prio: p("s_setprio 2")
    stamp(p, 3)
    tag_prefetch(p)
    c0 = -2.0*math.sqrt(2.0/math.pi)*LOG2E
    c1 = c0*0.044715
    p(f"""
    s_mov_b32 s40, {f32(c1)}
    s_mov_b32 s41, {f32(c1)}
    v_mov_b32 v{WF[0]}, {f32(c0)}
    v_mov_b32 v{WF[0]+1}, {f32(c0)}
    s_add_u32 s{sT}, s{sH}, {112*1024}
    s_nop 7
    """)
    T = WF[1]
    for tt in range(4):
      for mi in range(2):
        A = ACC + 64*mi + 16*tt
        for i in range(4): p(f"v_pk_mul_f32 {vr(T+2*i,2)}, {vr(A+2*i,2)}, {vr(A+2*i,2)}")
        for i in range(4): p(f"v_pk_fma_f32 {vr(T+2*i,2)}, {vr(T+2*i,2)}, s[40:41], {vr(WF[0],2)}")
        for i in range(4): p(f"v_pk_mul_f32 {vr(T+2*i,2)}, {vr(T+2*i,2)}, {vr(A+2*i,2)}")
        for i in range(8): p(f"v_exp_f32 v{T+i}, v{T+i}")
        for i in range(4): p(f"v_pk_mul_f32 {vr(A+2*i,2)}, {vr(A+2*i,2)}, {vr(A+8+2*i,2)}")
        for i in range(4): p(f"v_pk_add_f32 {vr(T+2*i,2)}, {vr(T+2*i,2)}, 1.0 op_sel_hi:[1,0]")
        for i in range(8): p(f"v_rcp_f32 v{T+i}, v{T+i}")
        p("s_nop 0")
        for i in range(4): p(f"v_pk_mul_f32 {vr(A+2*i,2)}, {vr(A+2*i,2)}, {vr(T+2*i,2)}")
        for i in range(4): p(f"v_cvt_pk_bf16_f32 v{A+8+i}, v{A+2*i}, v{A+2*i+1}")
        so = sH if mi == 0 else sT
        p(f"buffer_store_dwordx4 {vr(A+8,4)}, v{vL16}, s[{sWS}:{sWS+3}], s{so} offen offset:{tt*1024}{C.sc}")
    if C.fused:
        p(f"""
        s_lshl_b32 s{sT2}, s{sMt}, 4
        s_add_u32 s{sT2}, s{sT2}, s{sFt}
        s_lshl_b32 s{sT2}, s{sT2}, 2
        s_add_u32 s{sT2}, s{sT2}, {FH}
        """)
        signal(p, L, sT2, True)
    stamp_out(p, 1)
    p(f"{L}_done:")
    return max(V.next, ng)

def attn(p, L):
    NR = 4; CH = 16384
    sHead, sQb, sSrc, sDst, sC, sRd, sO, sFb = 12, 13, 14, 15, 16, 17, 18, 19
    sMask = 20
    V = Alloc(VB, 255)
    vDma = V("dma"); vV0 = V("vV0"); vK = V("vK"); vV = V("vV"); vIdx = V("idx")
    QA = V("QA", 4, 4); QB = V("QB", 4, 4)
    KF = [V(f"K{i}", 4, 4) for i in range(2)]
    VF = [V(f"V{i}", 8, 4) for i in range(4)]
    SA = [V(f"SA{i}", 16, 4) for i in range(2)]
    SB = [V(f"SB{i}", 16, 4) for i in range(2)]
    OA = V("OA", 16, 4); OB = V("OB", 16, 4); CA = V("CA", 16, 4); CB = V("CB", 16, 4)
    sQo, sFo, sFq = 23, 24, 25
    stamp(p, 0)
    p(f"""
    s_and_b32 s{sT}, s{sID}, 7
    s_lshl_b32 s{sFq}, s{sT}, 7
    s_add_u32 s{sFq}, s{sFq}, {FQ}
    s_lshr_b32 s{sT2}, s{sID}, 3
    s_lshl_b32 s{sHead}, s{sT}, 2
    s_and_b32 s{sT}, s{sT2}, 3
    s_add_u32 s{sHead}, s{sHead}, s{sT}
    s_lshr_b32 s{sQb}, s{sT2}, 2
    s_lshl_b32 s{sFo}, s{sQb}, 5
    s_add_u32 s{sFo}, s{sFo}, s{sHead}
    s_lshl_b32 s{sFo}, s{sFo}, 2
    s_add_u32 s{sFo}, s{sFo}, {FO}
    v_lshl_add_u32 v{vDma}, v{vWv}, 12, v{vL16}
    s_lshl_b32 s{sDst}, s{sWave}, 12
    s_lshl_b32 s{sT}, s{sQb}, 3
    s_lshl_b32 s{sT2}, s{sWave}, 1
    s_add_u32 s{sT}, s{sT}, s{sT2}
    s_lshl_b32 s{sO}, s{sT}, 15
    s_lshl_b32 s{sT2}, s{sHead}, 10
    s_add_u32 s{sO}, s{sO}, s{sT2}
    s_add_u32 s{sO}, s{sO}, {WS_O}
    s_lshl_b32 s{sT2}, s{sHead}, 6
    s_add_u32 s{sT}, s{sT}, s{sT2}
    s_lshl_b32 s{sQo}, s{sT}, 10
    s_lshl_b32 s{sHead}, s{sHead}, 17
    s_add_u32 s{sHead}, s{sHead}, {WS_KV}
    s_mov_b32 s{sSrc}, s{sHead}
    s_mov_b32 s{sC}, 0
    """)
    def setup():
        p(f"""
        s_mov_b32 s{sMask}, 0x0000ffff
        s_mov_b32 s{sMask+1}, 0x0000ffff
        v_mov_b32 v{vIdx}, 0xdddddddd
        v_mov_b32 v{vK}, v{vL16}
        v_and_b32 v{t0}, 15, v{vL}
        v_lshlrev_b32 v{t0}, 4, v{t0}
        v_lshrrev_b32 v{t1}, 5, v{vL}
        v_lshl_add_u32 v{vV0}, v{t1}, 8, v{t0}
        v_add_u32 v{vV0}, 1024, v{vV0}
        v_mov_b32 v{vV}, v{vV0}
        v_and_b32 v{t0}, 27, v{vL}
        v_cmp_eq_u32 vcc, 16, v{t0}
        v_mov_b32 v{t1}, 0x3f803f80
        s_nop 0
        v_cndmask_b32 v{t0}, 0, v{t1}, vcc
        """)
        for b in range(4):
            for i in range(8): p(f"v_mov_b32 v{VF[b]+i}, v{t0}")
        for i in range(16):
            p(f"v_mov_b32 v{OA+i}, 0")
            p(f"v_mov_b32 v{OB+i}, 0")
            p(f"v_mov_b32 v{SB[1]+i}, 0")
    if C.fused:
        setup()
        wait_flags(p, L, sFq, 32)
    else:
        p("s_waitcnt lgkmcnt(0)")
    stamp(p, 1)
    p(f"""
    buffer_load_dwordx4 {vr(QA,4)}, v{vL16}, s[{sWS}:{sWS+3}], s{sQo} offen{C.sc}
    buffer_load_dwordx4 {vr(QB,4)}, v{vL16}, s[{sWS}:{sWS+3}], s{sQo} offen offset:1024{C.sc}
    """)
    def dma():
        p(f"""
        s_mov_b32 m0, s{sDst}
        s_add_u32 s{sDst}, s{sDst}, {CH}
        buffer_load_dwordx4 v{vDma}, s[{sWS}:{sWS+3}], s{sSrc} offen{C.sc} lds
        buffer_load_dwordx4 v{vDma}, s[{sWS}:{sWS+3}], s{sSrc} offen offset:1024{C.sc} lds
        buffer_load_dwordx4 v{vDma}, s[{sWS}:{sWS+3}], s{sSrc} offen offset:2048{C.sc} lds
        buffer_load_dwordx4 v{vDma}, s[{sWS}:{sWS+3}], s{sSrc} offen offset:3072{C.sc} lds
        s_and_b32 s{sDst}, s{sDst}, {NR*CH-1}
        s_add_u32 s{sSrc}, s{sSrc}, {CH}
        """)
    p(f"{L}_pro:")
    dma()
    p(f"""
    s_add_u32 s{sC}, s{sC}, 1
    s_cmp_lt_u32 s{sC}, {NR}
    s_cbranch_scc1 {L}_pro
    """)
    if not C.fused: setup()
    def kread(j, b): p(f"ds_read_b128 {vr(KF[b],4)}, v{vK} offset:{j*2048}")
    def vread(j, b):
        p(f"s_mov_b64 exec, s[{sMask}:{sMask+1}]")
        p(f"ds_read_b128 {vr(VF[b],4)}, v{vV} offset:{j*2048}")
        p(f"ds_read_b128 {vr(VF[b]+4,4)}, v{vV} offset:{j*2048+512}")
        p(f"s_mov_b64 exec, -1")
    p(f"""
    s_waitcnt vmcnt({4*(NR-1)})
    s_barrier
    """)
    stamp(p, 2)
    kread(0, 0); kread(1, 1); vread(0, 0); vread(1, 1)
    p(f"""
    s_waitcnt lgkmcnt(5)
    {MFMA} {vr(SA[0],16)}, {vr(KF[0],4)}, {vr(QA,4)}, 0
    {MFMA} {vr(SB[0],16)}, {vr(KF[0],4)}, {vr(QB,4)}, 0
    s_nop 10
    """)
    def rowmax(S, T, first=True):
        if first:
            p(f"v_max3_f32 v{T}, v{S}, v{S+1}, v{S+2}")
            for i in range(3, 15, 2): p(f"v_max3_f32 v{T}, v{S+i}, v{S+i+1}, v{T}")
            p(f"v_max_f32 v{T}, v{S+15}, v{T}")
        else:
            for i in range(0, 16, 2): p(f"v_max3_f32 v{T}, v{S+i}, v{S+i+1}, v{T}")
    def bcast_neg(T, T2, Cc):
        p(f"""
        v_mov_b32 v{T2}, v{T}
        s_nop 1
        v_permlane32_swap_b32 v{T}, v{T2}
        s_nop 1
        v_max_f32 v{T}, v{T}, v{T2}
        """)
        for i in range(16): p(f"v_sub_f32 v{Cc+i}, 0, v{T}")
    rowmax(SA[0], t0); bcast_neg(t0, t1, CA)
    p("s_nop 1")
    p(f"{MFMA} {vr(SA[0],16)}, {vr(KF[0],4)}, {vr(QA,4)}, {vr(CA,16)}")
    rowmax(SB[0], t0); bcast_neg(t0, t1, CB)
    p(f"""
    s_mov_b32 s{sC}, 0
    s_mov_b32 s{sRd}, 0
    {MFMA} {vr(SB[0],16)}, {vr(KF[0],4)}, {vr(QB,4)}, {vr(CB,16)}
    s_branch {L}_mid
    """)
    POS = (0, 5, 10)
    def phase(S, mf, extra):
        for i in range(16):
            for k in range(3):
                if i == POS[k]:
                    p(mf[k])
                    if k in extra: extra[k]()
            p(f"v_exp_f32 v{S+i}, v{S+i}")
    def tile(j):
        tb = j % 2; vb = (j + 2) % 4; vprev = (j + 1) % 4
        mfA = [f"{SMF} {vr(OB,16)}, {vr(VF[vprev],4)}, {vr(SB[1-tb],8)}, v{vIdx}",
               f"{SMF} {vr(OB,16)}, {vr(VF[vprev]+4,4)}, {vr(SB[1-tb]+8,8)}, v{vIdx}",
               f"{MFMA} {vr(SA[1-tb],16)}, {vr(KF[1-tb],4)}, {vr(QA,4)}, {vr(CA,16)}"]
        mfB = [f"{SMF} {vr(OA,16)}, {vr(VF[vb],4)}, {vr(SA[tb],8)}, v{vIdx}",
               f"{SMF} {vr(OA,16)}, {vr(VF[vb]+4,4)}, {vr(SA[tb]+8,8)}, v{vIdx}",
               f"{MFMA} {vr(SB[1-tb],16)}, {vr(KF[1-tb],4)}, {vr(QB,4)}, {vr(CB,16)}"]
        def kr():
            p("s_waitcnt lgkmcnt(0)")
            kread(j, tb)
        phase(SA[tb], mfA, {0: kr})
        phase(SB[tb], mfB, {1: lambda: vread(j, j % 4)})
    p(f"{L}_top:")
    p(f"""
    s_add_u32 s{sRd}, s{sRd}, {CH}
    s_and_b32 s{sRd}, s{sRd}, {NR*CH-1}
    v_add_u32 v{vK}, s{sRd}, v{vL16}
    v_add_u32 v{vV}, s{sRd}, v{vV0}
    s_cmp_ge_u32 s{sC}, {8-NR+1}
    s_cbranch_scc1 {L}_nodma
    s_waitcnt vmcnt({4*(NR-2)}) lgkmcnt(0)
    s_barrier
    """)
    dma()
    p(f"""
    s_branch {L}_go
    {L}_nodma:
    s_waitcnt vmcnt(0) lgkmcnt(0)
    s_barrier
    {L}_go:
    """)
    tile(0); tile(1)
    p(f"""
    s_cmp_eq_u32 s{sC}, 8
    s_cbranch_scc1 {L}_fin
    {L}_mid:
    """)
    for j in range(2, 8): tile(j)
    p(f"""
    s_add_u32 s{sC}, s{sC}, 1
    s_branch {L}_top
    {L}_fin:
    s_nop 1
    {SMF} {vr(OB,16)}, {vr(VF[3],4)}, {vr(SB[1],8)}, v{vIdx}
    {SMF} {vr(OB,16)}, {vr(VF[3]+4,4)}, {vr(SB[1]+8,8)}, v{vIdx}
    s_mov_b32 s{sFb}, 0
    s_waitcnt lgkmcnt(0)
    s_nop 12
    """)
    stamp(p, 3)
    p(f"""
    v_add_f32 v{t1}, v{OA+8}, v{OB+8}
    """)
    for i in range(8):
        p(f"v_fmac_f32 v{t1}, 0, v{OA+i}")
        p(f"v_fmac_f32 v{t1}, 0, v{OB+i}")
    p(f"""
    v_cmp_nge_f32 vcc, {f32(2.0**30)}, v{t1}
    s_nop 1
    s_cbranch_vccz {L}_out
    """)
    sK = 22
    p(f"""
    v_mov_b32 v{CA}, 0xff800000
    v_mov_b32 v{CB}, 0xff800000
    s_mov_b32 s{sK}, s{sHead}
    s_mov_b32 s{sC}, 0
    {L}_fb1:
    buffer_load_dwordx4 {vr(KF[0],4)}, v{vL16}, s[{sWS}:{sWS+3}], s{sK} offen{C.sc}
    s_waitcnt vmcnt(0)
    {MFMA} {vr(SA[0],16)}, {vr(KF[0],4)}, {vr(QA,4)}, 0
    {MFMA} {vr(SB[0],16)}, {vr(KF[0],4)}, {vr(QB,4)}, 0
    s_nop 15
    """)
    rowmax(SA[0], CA, False)
    rowmax(SB[0], CB, False)
    p(f"""
    s_add_u32 s{sK}, s{sK}, 2048
    s_add_u32 s{sC}, s{sC}, 1
    s_cmp_lt_u32 s{sC}, 64
    s_cbranch_scc1 {L}_fb1
    v_mov_b32 v{t0}, v{CA}
    """)
    bcast_neg(t0, t1, CA)
    p(f"v_mov_b32 v{t0}, v{CB}")
    bcast_neg(t0, t1, CB)
    for i in range(16):
        p(f"v_mov_b32 v{OA+i}, 0")
        p(f"v_mov_b32 v{OB+i}, 0")
    p(f"""
    s_mov_b32 s{sK}, s{sHead}
    s_mov_b32 s{sC}, 0
    {L}_fb2:
    buffer_load_dwordx4 {vr(KF[0],4)}, v{vL16}, s[{sWS}:{sWS+3}], s{sK} offen{C.sc}
    s_mov_b64 exec, s[{sMask}:{sMask+1}]
    buffer_load_dwordx4 {vr(VF[0],4)}, v{vV0}, s[{sWS}:{sWS+3}], s{sK} offen{C.sc}
    buffer_load_dwordx4 {vr(VF[0]+4,4)}, v{vV0}, s[{sWS}:{sWS+3}], s{sK} offen offset:512{C.sc}
    s_mov_b64 exec, -1
    s_waitcnt vmcnt(0)
    {MFMA} {vr(SA[0],16)}, {vr(KF[0],4)}, {vr(QA,4)}, {vr(CA,16)}
    {MFMA} {vr(SB[0],16)}, {vr(KF[0],4)}, {vr(QB,4)}, {vr(CB,16)}
    s_nop 15
    """)
    for i in range(16): p(f"v_exp_f32 v{SA[0]+i}, v{SA[0]+i}")
    for i in range(16): p(f"v_exp_f32 v{SB[0]+i}, v{SB[0]+i}")
    p(f"""
    s_nop 2
    {SMF} {vr(OA,16)}, {vr(VF[0],4)}, {vr(SA[0],8)}, v{vIdx}
    {SMF} {vr(OA,16)}, {vr(VF[0]+4,4)}, {vr(SA[0]+8,8)}, v{vIdx}
    {SMF} {vr(OB,16)}, {vr(VF[0],4)}, {vr(SB[0],8)}, v{vIdx}
    {SMF} {vr(OB,16)}, {vr(VF[0]+4,4)}, {vr(SB[0]+8,8)}, v{vIdx}
    s_add_u32 s{sK}, s{sK}, 2048
    s_add_u32 s{sC}, s{sC}, 1
    s_cmp_lt_u32 s{sC}, 64
    s_cbranch_scc1 {L}_fb2
    s_nop 15
    {L}_out:
    """)
    def fin(O, off):
        p(f"v_rcp_f32 v{t0}, v{O+8}")
        p("s_nop 0")
        for i in range(8): p(f"v_mul_f32 v{O+i}, v{O+i}, v{t0}")
        for i in range(4): p(f"v_cvt_pk_bf16_f32 v{O+i}, v{O+2*i}, v{O+2*i+1}")
        p(f"buffer_store_dwordx4 {vr(O,4)}, v{vL16}, s[{sWS}:{sWS+3}], s{off} offen{C.sc if C.tail else ''}")
    p(f"s_add_u32 s{sT}, s{sO}, 32768")
    fin(OA, sO)
    fin(OB, sT)
    if C.tail: signal(p, L + "_o", sFo, False)
    stamp_out(p, 2)
    return V.next

def down(p, L, final):
    KT = 32 if final else 112
    NST = KT // 8
    NS = 4
    tail = C.tail and not final
    sW, sOut, sWo = 12, 16, 28
    sMt, sNt, sWoff, sM0, sXoff, sS, sB, sR = 20, 21, 22, 23, 24, 25, 26, 27
    V = Alloc(VB, 255)
    vL16b = V("l16b"); vW = V("vW", 4); vAw = V("vAw", 2); vG = V("g", 4, 2); vOut = V("vOut")
    XF = [V(f"xf{i}", 16, 4) for i in range(NS)]
    WF = [V("wf0", 8, 4), V("wf1", 8, 4)]
    ACC = V("acc", 64, 4)
    if tail: AC2 = V("ac2", 64, 4)
    else: BF = V("bf", 8, 4)
    sc = "" if final else C.sc
    stamp(p, 0)
    ldsrd(p, sW, 16 if final else 48, KT*16*1024)
    if final or tail: ldsrd(p, sOut, 64, 0x200000)
    if tail: ldsrd(p, sWo, 16, 512*1024)
    p(f"""
    s_and_b32 s{sT}, s{sID}, 7
    s_lshl_b32 s{sMt}, s{sT}, 2
    s_bfe_u32 s{sT}, s{sID}, 0x20003
    s_add_u32 s{sMt}, s{sMt}, s{sT}
    s_lshr_b32 s{sNt}, s{sID}, 5
    v_add_u32 v{vL16b}, {KT*1024}, v{vL16}
    v_lshrrev_b32 v{t0}, 3, v{vL}
    v_lshlrev_b32 v{t0}, 10, v{t0}
    v_bfe_u32 v{t1}, v{vL}, 4, 1
    v_lshlrev_b32 v{t1}, 2, v{t1}
    v_xor_b32 v{t1}, v{t1}, v{vL}
    v_and_b32 v{t1}, 7, v{t1}
    v_lshl_add_u32 v{vW}, v{t1}, 4, v{t0}
    v_add_u32 v{vW+1}, 7168, v{vW}
    v_add_u32 v{vW+2}, {2*7168}, v{vW}
    v_add_u32 v{vW+3}, {3*7168}, v{vW}
    """)
    if final:
        p(f"""
        s_add_u32 s{sR}, s{sNt}, s{sT}
        s_and_b32 s{sR}, s{sR}, 3
        """)
    else:
        p(f"""
        s_mul_i32 s{sR}, s{sNt}, 7
        s_lshr_b32 s{sR}, s{sR}, 2
        s_mul_i32 s{sT}, s{sT}, 7
        s_lshr_b32 s{sT}, s{sT}, 1
        s_add_u32 s{sR}, s{sR}, s{sT}
        s_sub_u32 s{sT}, s{sR}, 14
        s_cmp_ge_u32 s{sR}, 14
        s_cselect_b32 s{sR}, s{sT}, s{sR}
        """)
    p(f"""
    s_mul_i32 s{sT}, s{sWave}, {NST}
    s_add_u32 s{sT}, s{sT}, s{sR}
    s_lshl_b32 s{sWoff}, s{sT}, 15
    s_lshl_b32 s{sT2}, s{sNt}, 7
    s_add_u32 s{sWoff}, s{sWoff}, s{sT2}
    s_lshl_b32 s{sM0}, s{sWave}, 14
    s_mul_i32 s{sXoff}, s{sMt}, {2*KT*1024}
    s_lshl_b32 s{sT}, s{sT}, 11
    s_add_u32 s{sXoff}, s{sXoff}, s{sT}
    s_add_u32 s{sXoff}, s{sXoff}, {WS_O if final else WS_H}
    s_lshl_b32 s{sB}, s{sID}, 13
    s_lshl_b32 s{sT}, s{sWave}, 11
    s_add_u32 s{sB}, s{sB}, s{sT}
    s_add_u32 s{sB}, s{sB}, {WS_B}
    """)
    def outaddr():
        p(f"""
        v_and_b32 v{t0}, 31, v{vL}
        v_lshrrev_b32 v{t1}, 1, v{vWv}
        v_lshl_add_u32 v{t0}, v{t1}, 5, v{t0}
        v_lshlrev_b32 v{vOut}, 10, v{t0}
        v_and_b32 v{t1}, 1, v{vWv}
        v_lshl_add_u32 v{vOut}, v{t1}, 6, v{vOut}
        v_lshrrev_b32 v{t1}, 5, v{vL}
        v_lshl_add_u32 v{vOut}, v{t1}, 4, v{vOut}
        """)
    def setup():
        tr_lane_addr(p, vAw, 1024, 128, 32)
        p(f"""
        v_bfe_u32 v{t0}, v{vL}, 3, 1
        v_lshl_add_u32 v{vAw}, v{t0}, 6, v{vAw}
        v_lshl_add_u32 v{vAw}, v{vWv}, 14, v{vAw}
        v_xor_b32 v{vAw+1}, 64, v{vAw}
        """)
        for i in range(64): p(f"v_mov_b32 v{ACC+i}, 0")
        if not final:
            for i in range(8): p(f"v_mov_b32 v{WF[1]+i}, 0")
            for i in range(8): p(f"v_mov_b32 v{XF[3]+8+i}, 0")
    fusedw = C.fused and not final
    if fusedw:
        setup()
        if tail: outaddr()
        p(f"""
        s_lshr_b32 s{sT3}, s{sMt}, 1
        s_lshl_b32 s{sT3}, s{sT3}, 6
        s_add_u32 s{sT3}, s{sT3}, {FH}
        s_waitcnt lgkmcnt(0)
        """)
        wait_flags(p, L, sT3, 14)
        if C.prio: p("s_setprio 0")
    else:
        p("s_waitcnt lgkmcnt(0)")
    stamp(p, 1)
    def wdma(p, srdw, soff):
        for j in range(4):
            p(f"buffer_load_dwordx4 v{vW+j}, s[{srdw}:{srdw+3}], s{soff} offen offset:{j*1024} lds")
    def dma(p, u):
        p(f"""
        s_add_u32 m0, s{sM0}, {u*4096}
        buffer_load_dwordx4 {vr(XF[u],4)}, v{vL16}, s[{sWS}:{sWS+3}], s{sXoff} offen{sc}
        buffer_load_dwordx4 v{vW}, s[{sW}:{sW+3}], s{sWoff} offen lds
        buffer_load_dwordx4 v{vW+1}, s[{sW}:{sW+3}], s{sWoff} offen offset:1024 lds
        buffer_load_dwordx4 {vr(XF[u]+4,4)}, v{vL16b}, s[{sWS}:{sWS+3}], s{sXoff} offen{sc}
        buffer_load_dwordx4 v{vW+2}, s[{sW}:{sW+3}], s{sWoff} offen offset:2048 lds
        buffer_load_dwordx4 v{vW+3}, s[{sW}:{sW+3}], s{sWoff} offen offset:3072 lds
        buffer_load_dwordx4 {vr(XF[u]+8,4)}, v{vL16}, s[{sWS}:{sWS+3}], s{sXoff} offen offset:1024{sc}
        buffer_load_dwordx4 {vr(XF[u]+12,4)}, v{vL16b}, s[{sWS}:{sWS+3}], s{sXoff} offen offset:1024{sc}
        s_add_u32 s{sR}, s{sR}, 1
        s_cmp_eq_u32 s{sR}, {NST}
        s_cselect_b32 s{sT}, {1-NST}, 1
        s_lshl_b32 s{sT2}, s{sT}, 15
        s_add_u32 s{sWoff}, s{sWoff}, s{sT2}
        s_lshl_b32 s{sT2}, s{sT}, 11
        s_add_u32 s{sXoff}, s{sXoff}, s{sT2}
        """)
    npro = NS if final else NS-1
    for i in range(npro): dma(p, i)
    if final:
        outaddr()
        p(f"""
        v_lshlrev_b32 v{t1}, 2, v{t0}
        s_lshl_b32 s{sT}, s{sMt}, 8
        s_add_u32 s{sT}, s{sT}, {WS_G}
        buffer_load_dword v{vG}, v{t1}, s[{sWS}:{sWS+3}], s{sT} offen
        buffer_load_dwordx4 {vr(BF,4)}, v{vL16}, s[{sWS}:{sWS+3}], s{sB} offen
        buffer_load_dwordx4 {vr(BF+4,4)}, v{vL16}, s[{sWS}:{sWS+3}], s{sB} offen offset:1024
        """)
    if not fusedw: setup()
    def reads(p, u, ks, b):
        for t in range(2):
            for ab in range(2):
                p(f"ds_read_b64_tr_b16 {vr(WF[b]+4*t+2*ab,2)}, v{vAw+t} offset:{u*4096 + ks*2048 + ab*512}")
    def mfmas(p, b, xf, acc=ACC, zero=False):
        for mi in range(2):
            for t in range(2):
                A = acc + 16*(2*mi+t)
                p(f"{MFMA} {vr(A,16)}, {vr(WF[b]+4*t,4)}, {vr(xf+4*mi,4)}, {'0' if zero else vr(A,16)}")
    if STAMP:
        p(f"s_waitcnt vmcnt({27 if final else 16})")
        stamp(p, 2)
    if final:
        for u in range(4):
            p(f"s_waitcnt vmcnt({8*(3-u)+3})")
            reads(p, u, 0, 0)
            reads(p, u, 1, 1)
            p("s_waitcnt lgkmcnt(4)")
            mfmas(p, 0, XF[u])
            p("s_waitcnt lgkmcnt(0)")
            mfmas(p, 1, XF[u]+8)
    else:
        p(f"s_mov_b32 s{sS}, 0")
        p(f"{L}_loop:")
        for u in range(4):
            p(f"s_waitcnt vmcnt({8*(NS-2)}) lgkmcnt(0)")
            reads(p, u, 0, 0)
            mfmas(p, 1, XF[(u+3) % 4]+8)
            if u == 2:
                p(f"""
                s_cmp_eq_u32 s{sS}, 3
                s_cbranch_scc1 {L}_done
                """)
            if u == 3:
                p(f"""
                s_cmp_eq_u32 s{sS}, 2
                s_cselect_b32 s{sXoff}, {OOB}, s{sXoff}
                s_cselect_b32 s{sWoff}, {OOB}, s{sWoff}
                """)
            reads(p, u, 1, 1)
            p("s_waitcnt lgkmcnt(4)")
            weave(p, lines(mfmas, 0, XF[u]), (0, 3, chunks(lines(dma, (u+3) % 4))))
        p(f"""
        s_add_u32 s{sS}, s{sS}, 1
        s_branch {L}_loop
        {L}_done:
        """)
    stamp(p, 3)
    if tail:
        if C.prio: p("s_setprio 2")
        p(f"""
        s_waitcnt vmcnt(0) lgkmcnt(0)
        s_lshl_b32 s{sWoff}, s{sWave}, 17
        s_lshl_b32 s{sT2}, s{sNt}, 7
        s_add_u32 s{sWoff}, s{sWoff}, s{sT2}
        v_and_b32 v{t0}, 31, v{vL}
        v_lshlrev_b32 v{t1}, 2, v{t0}
        s_lshl_b32 s{sT}, s{sMt}, 8
        s_add_u32 s{sT}, s{sT}, {WS_G}
        buffer_load_dword v{vG}, v{t1}, s[{sWS}:{sWS+3}], s{sT} offen sc1
        buffer_load_dword v{vG+2}, v{t1}, s[{sWS}:{sWS+3}], s{sT} offen offset:128 sc1
        """)
        for u in range(4):
            p(f"s_add_u32 m0, s{sM0}, {u*4096}")
            p("s_nop 0")
            wdma(p, sWo, sWoff)
            p(f"s_add_u32 s{sWoff}, s{sWoff}, 32768")
        p(f"""
        s_lshl_b32 s{sXoff}, s{sMt}, 16
        s_lshl_b32 s{sT}, s{sWave}, 13
        s_add_u32 s{sXoff}, s{sXoff}, s{sT}
        s_add_u32 s{sXoff}, s{sXoff}, {WS_O}
        v_add_u32 v{vL16b}, 32768, v{vL16}
        s_lshr_b32 s{sT3}, s{sMt}, 2
        s_lshl_b32 s{sT3}, s{sT3}, 7
        s_add_u32 s{sT3}, s{sT3}, {FO}
        s_waitcnt vmcnt(16)
        """)
        for mi in range(2):
            p(f"""
            v_sub_f32 v{t0}, 1.0, v{vG+2*mi}
            v_cvt_pk_bf16_f32 v{t0}, v{t0}, v{t0}
            v_lshlrev_b32 v{t0}, 16, v{t0}
            v_mov_b32 v{vG+2*mi+1}, v{vG+2*mi}
            """)
            for i in range(32): p(f"v_mul_f32 v{ACC+32*mi+i}, v{ACC+32*mi+i}, v{t0}")
        wait_flags(p, L + "_o", sT3, 32)
        stamp(p, 5)
        for u in range(4):
            p(f"buffer_load_dwordx4 {vr(XF[u],4)}, v{vL16}, s[{sWS}:{sWS+3}], s{sXoff} offen offset:{(u%2)*2048} sc1")
            p(f"buffer_load_dwordx4 {vr(XF[u]+4,4)}, v{vL16b}, s[{sWS}:{sWS+3}], s{sXoff} offen offset:{(u%2)*2048} sc1")
            p(f"buffer_load_dwordx4 {vr(XF[u]+8,4)}, v{vL16}, s[{sWS}:{sWS+3}], s{sXoff} offen offset:{(u%2)*2048+1024} sc1")
            p(f"buffer_load_dwordx4 {vr(XF[u]+12,4)}, v{vL16b}, s[{sWS}:{sWS+3}], s{sXoff} offen offset:{(u%2)*2048+1024} sc1")
            if u == 1: p(f"s_add_u32 s{sXoff}, s{sXoff}, 4096")
        p("s_waitcnt vmcnt(16)")
        reads(p, 0, 0, 0)
        for u in range(4):
            reads(p, u, 1, 1)
            p(f"s_waitcnt vmcnt({4*(3-u)+2}) lgkmcnt(4)")
            mfmas(p, 0, XF[u], AC2, u == 0)
            if u < 3: reads(p, u+1, 0, 0)
            p(f"s_waitcnt vmcnt({4*(3-u)}) lgkmcnt({4 if u < 3 else 0})")
            mfmas(p, 1, XF[u]+8, AC2)
        stamp(p, 6)
        p("s_nop 9")
        for j in range(4):
            for i in range(8):
                p(f"v_pk_fma_f32 {vr(ACC+16*j+2*i,2)}, {vr(AC2+16*j+2*i,2)}, {vr(vG+2*(j//2),2)}, {vr(ACC+16*j+2*i,2)}")
    p(f"""
    s_waitcnt vmcnt(0) lgkmcnt(0)
    s_barrier
    v_lshl_add_u32 v{t0}, v{vWv}, 12, v{vL16}
    v_lshl_add_u32 v{t1}, v{vWv}, 14, v{vL16}
    s_nop 9
    """)
    for j in range(4):
        for q in range(4):
            p(f"ds_write_b128 v{t0}, {vr(ACC+16*j+4*q,4)} offset:{j*16384 + q*1024}")
    p(f"""
    s_waitcnt lgkmcnt(0)
    s_barrier
    """)
    for w in range(4):
        for q in range(4):
            p(f"ds_read_b128 {vr(ACC+16*w+4*q,4)}, v{t1} offset:{w*4096 + q*1024}")
    p("s_waitcnt lgkmcnt(8)")
    for i in range(8): p(f"v_pk_add_f32 {vr(ACC+2*i,2)}, {vr(ACC+2*i,2)}, {vr(ACC+16+2*i,2)}")
    p("s_waitcnt lgkmcnt(0)")
    for i in range(8): p(f"v_pk_add_f32 {vr(ACC+32+2*i,2)}, {vr(ACC+32+2*i,2)}, {vr(ACC+48+2*i,2)}")
    for i in range(8): p(f"v_pk_add_f32 {vr(ACC+2*i,2)}, {vr(ACC+2*i,2)}, {vr(ACC+32+2*i,2)}")
    if final or tail:
        p(f"""
        s_lshl_b32 s{sT}, s{sMt}, 16
        s_lshl_b32 s{sT2}, s{sNt}, 7
        s_add_u32 s{sT}, s{sT}, s{sT2}
        """)
    if final:
        p(f"""
        v_sub_f32 v{t0}, 1.0, v{vG}
        v_cvt_pk_bf16_f32 v{t0}, v{t0}, v{t0}
        v_lshlrev_b32 v{t0}, 16, v{t0}
        """)
        for i in range(8):
            p(f"v_lshlrev_b32 v{ACC+16+2*i}, 16, v{BF+i}")
            p(f"v_and_b32 v{ACC+17+2*i}, 0xffff0000, v{BF+i}")
        for i in range(16):
            p(f"v_mul_f32 v{ACC+i}, v{ACC+i}, v{vG}")
            p(f"v_fmac_f32 v{ACC+i}, v{ACC+16+i}, v{t0}")
    for i in range(8): p(f"v_cvt_pk_bf16_f32 v{ACC+i}, v{ACC+2*i}, v{ACC+2*i+1}")
    if final or tail:
        p(f"buffer_store_dwordx4 {vr(ACC,4)}, v{vOut}, s[{sOut}:{sOut+3}], s{sT} offen")
        p(f"buffer_store_dwordx4 {vr(ACC+4,4)}, v{vOut}, s[{sOut}:{sOut+3}], s{sT} offen offset:32")
    else:
        p(f"buffer_store_dwordx4 {vr(ACC,4)}, v{vL16}, s[{sWS}:{sWS+3}], s{sB} offen")
        p(f"buffer_store_dwordx4 {vr(ACC+4,4)}, v{vL16}, s[{sWS}:{sWS+3}], s{sB} offen offset:1024")
    stamp_out(p, 4 if final else 3, 8 if tail else 5)
    return V.next

def single(name, body):
    p = Prog()
    p(f"""
    s_cmp_ge_u32 s2, 256
    s_cbranch_scc1 {name}_end
    s_mov_b32 s{sID}, s2
    """)
    common(p)
    nv = body(p, name)
    p(f"{name}_end:")
    p("s_endpgm")
    return (name, p.text(), nv, LDS_WG, 256)
def dual(name, a, b):
    p = Prog()
    p(f"""
    s_cmp_ge_u32 s2, 512
    s_cbranch_scc1 {name}_end
    s_and_b32 s{sID}, s2, 255
    """)
    common(p)
    p(f"""
    s_cmp_ge_u32 s2, 256
    s_cbranch_scc1 {name}_b
    """)
    na = a(p, name + "_A")
    p(f"{name}_end:")
    p("s_endpgm")
    p(f"{name}_b:")
    nb = b(p, name + "_B")
    p("s_endpgm")
    return (name, p.text(), max(na, nb, 129), LDS_WG, 512)

def emit(ks, path):
    out = "; generated by gen3.py (hand-written generator)\n"
    for n, txt, nv, lds, g in ks:
        out += f"; @launch kernel={n} grid=({g},1,1) block=(256,1,1) lds={lds}\n"
    out += '.amdgcn_target "amdgcn-amd-amdhsa--gfx950"\n.text\n'
    for n, txt, nv, lds, g in ks: out += kernel_header(n) + txt
    out += '.section .rodata,"a"\n'
    for n, txt, nv, lds, g in ks:
        out += ".p2align 6\n" + kernel_desc(n, nv)
        print(n, "vgprs", nv, "lds", lds, "lines", txt.count("\n"), file=sys.stderr)
    open(path, "w").write(out)

dn = lambda p, L: down(p, L, False)
fn = lambda p, L: down(p, L, True)
def build(cfg, path):
    if cfg == "sep":
        ks = [single("qkv_kernel", qkv), single("up_kernel", up), single("attn_kernel", attn), single("down_kernel", dn), single("fin_kernel", fn)]
    elif cfg == "B3":
        ks = [dual("k1_kernel", qkv, up), dual("k2_kernel", attn, dn), single("fin_kernel", fn)]
    elif cfg in ("P2", "P1"):
        C.fused = True; C.sc = " sc1"; C.tail = cfg == "P1"; C.prio = int(os.environ.get("PRIO", "0"))
        def A(p, L): return max(qkv(p, L + "q"), attn(p, L + "a"), 256)
        def B(p, L): return max(up(p, L + "u"), dn(p, L + "d"))
        ks = [dual(NAME + "_kernel", A, B)]
        if cfg == "P2":
            C.fused = False; C.sc = ""
            ks.append(single("fin_kernel", fn))
    elif cfg == "q2":
        k = single("qkv_kernel", qkv); ks = [k]; rep = 3
    elif cfg == "u2":
        k = single("up_kernel", up); ks = [k]; rep = 3
    elif cfg == "d2":
        k = single("down_kernel", dn); ks = [k]; rep = 3
    elif cfg == "f2":
        k = single("fin_kernel", fn); ks = [k]; rep = 3
    emit(ks, path)
    if cfg[1] == "2" and cfg[0] != "P":
        t = open(path).read().split("\n")
        t = [t[0], t[1], t[1]] + t[1:]
        open(path, "w").write("\n".join(t))

if __name__ == "__main__":
    build(sys.argv[1], sys.argv[2] if len(sys.argv) > 2 else f"cdna_kernels/{NAME}.s")
```

```python
import sys, math, os, struct
from asmlib import *

NAME = "gated_mix__softmax_full_mha__geglu_ffn__prompt"
WS_Q  = 0
WS_KV = 2 << 20
WS_H  = 8 << 20
WS_O  = 16 << 20
WS_B  = 18 << 20
WS_G  = 20 << 20
WS_FL = (20 << 20) + 0x10000
WS_ST = (20 << 20) + 0x80000
WS_USED = 22 << 20
OOB = 0x40000000
LOG2E = 1.4426950408889634
def f32(x): return "0x%08x" % struct.unpack("<I", struct.pack("<f", x))[0]
STAMP = int(os.environ.get("STAMP", "0"))
MFMA = "v_mfma_f32_32x32x16_bf16"
SMF = "v_smfmac_f32_32x32x32_bf16"
LDS_WG = 81920

sID = 3
sWS = 4
sWave = 8
sT, sT2, sT3 = 9, 10, 11
vL, vWv, vL16, t0, t1 = 1, 2, 3, 4, 5
VB = 6

DSTAMP = int(os.environ.get("DSTAMP", "0"))
def dstamp(p, idx, inv=False): pass
DMAP = {(0,0):1, (0,1):2, (0,2):3, (0,3):4, (0,4):5, (2,1):6, (2,2):7, (2,3):8, (1,1):9, (1,2):10, (1,3):11, (1,4):12, (3,1):13, (3,3):14, (3,7):15}
def stamp(p, i):
    if STAMP:
        p(f"s_memrealtime s[{64+2*i}:{65+2*i}]")
        p(f"s_memtime s[{80+2*i}:{81+2*i}]")
        p("s_waitcnt lgkmcnt(0)")
def stamp_out(p, kid, n=5):
    if STAMP:
        p("s_waitcnt vmcnt(0)")
        stamp(p, n-1)
        if DSTAMP:
            p(f"""
            s_lshl_b32 s60, s{sID}, 2
            s_add_u32 s60, s60, s{sWave}
            s_cmp_lg_u32 s60, {DSTAMP*4+1}
            s_cbranch_scc1 dso{kid}
            v_mov_b32 v{t0}, 0
            s_mov_b64 exec, 1
            """)
            for i in range(n):
                if (kid, i) in DMAP:
                    p(f"v_mov_b32 v{t1}, s{64+2*i}")
                    p(f"buffer_store_dword v{t1}, v{t0}, s[{sDbg}:{sDbg+3}], 0 offen offset:{4*DMAP[(kid,i)]}")
            p("s_mov_b64 exec, -1")
            p(f"dso{kid}:")
            return
        p(f"""
        s_lshl_b32 s60, s{sID}, 3
        s_add_u32 s60, s60, s{sWave}
        s_lshl_b32 s60, s60, 6
        s_add_u32 s60, s60, {WS_ST + kid*131072}
        v_mov_b32 v{t0}, 0
        s_mov_b64 exec, 1
        """)
        for i in range(n):
            p(f"v_mov_b32 v{t1}, s{64+2*i}")
            p(f"buffer_store_dword v{t1}, v{t0}, s[{sWS}:{sWS+3}], s60 offen offset:{4*i}")
            p(f"v_mov_b32 v{t1}, s{80+2*i}")
            p(f"buffer_store_dword v{t1}, v{t0}, s[{sWS}:{sWS+3}], s60 offen offset:{32+4*i}")
        p("s_mov_b64 exec, -1")

def common(p):
    p(f"""
    s_load_dwordx2 s[{sWS}:{sWS+1}], s[0:1], 80
    v_and_b32 v{vL}, 63, v0
    v_lshrrev_b32 v{vWv}, 6, v0
    s_mov_b32 s{sWS+2}, {WS_USED:#x}
    v_readfirstlane_b32 s{sWave}, v{vWv}
    s_mov_b32 s{sWS+3}, 0x20000
    v_lshlrev_b32 v{vL16}, 4, v{vL}
    """)
    if C.fused: ldsrd(p, sDbg, 72, 256)
def ldsrd(p, d, off, nbytes):
    p(f"""
    s_load_dwordx2 s[{d}:{d+1}], s[0:1], {off}
    s_mov_b32 s{d+2}, {nbytes:#x}
    s_mov_b32 s{d+3}, 0x20000
    """)
def tr_lane_addr(p, vd, hstride, rowbytes, nhbytes):
    p(f"""
    v_lshrrev_b32 v{t0}, 5, v{vL}
    v_mul_u32_u24 v{vd}, {hstride}, v{t0}
    v_bfe_u32 v{t0}, v{vL}, 2, 2
    v_mul_u32_u24 v{t0}, {rowbytes}, v{t0}
    v_bfe_u32 v{t1}, v{vL}, 4, 1
    v_mul_u32_u24 v{t1}, {nhbytes}, v{t1}
    v_add3_u32 v{vd}, v{vd}, v{t0}, v{t1}
    v_and_b32 v{t0}, 1, v{vL}
    v_and_b32 v{t1}, 2, v{vL}
    v_lshl_add_u32 v{vd}, v{t0}, 4, v{vd}
    v_lshl_add_u32 v{vd}, v{t1}, 2, v{vd}
    """)
def xfrag_addr(p, vd):
    p(f"""
    v_and_b32 v{t0}, 31, v{vL}
    v_lshlrev_b32 v{vd}, 7, v{t0}
    v_bfe_u32 v{t0}, v{vL}, 1, 3
    v_lshrrev_b32 v{t1}, 5, v{vL}
    v_xor_b32 v{t0}, v{t0}, v{t1}
    v_lshl_add_u32 v{vd}, v{t0}, 4, v{vd}
    """)

def lines(fn, *a):
    q = Prog(); fn(q, *a); return [l.strip() for l in q.lines]
def chunks(ls):
    out, cur = [], []
    for l in ls:
        cur.append(l)
        if l.startswith("buffer_"):
            out.append(cur); cur = []
    if cur: out[-1] = out[-1] + cur
    return out
def weave(p, mf, *streams):
    n = len(mf)
    after = [[] for _ in range(n)]
    for first, last, items in streams:
        k = len(items); span = last - first + 1
        for i, it in enumerate(items):
            after[first + (i*span)//k] += [it] if isinstance(it, str) else list(it)
    for i in range(n):
        p(mf[i])
        for l in after[i]: p(l)

class Cfg:
    sc = ""
    fused = False
    tail = False
    prio = 0
C = Cfg()
sDbg = 44
sTag = 48
sCnt = 49
vTag = 255
FQ, FO, FH = WS_FL, WS_FL + 1024, WS_FL + 2048
SPIN_MAX = 1 << 17

def tag_prefetch(p):
    if C.fused:
        p(f"v_mov_b32 v{vTag}, 0")
        p(f"buffer_load_dword v{vTag}, v{vTag}, s[{sDbg}:{sDbg+3}], 0 offen sc1")
def tag_get(p, L):
    p(f"""
    s_mov_b32 s{sCnt}, 0
    {L}_tg:
    v_readfirstlane_b32 s{sTag}, v{vTag}
    s_add_u32 s{sCnt}, s{sCnt}, 1
    s_cmp_lg_u32 s{sTag}, 0
    s_cbranch_scc1 {L}_tgd
    s_cmp_gt_u32 s{sCnt}, {SPIN_MAX}
    s_cbranch_scc1 {L}_tgd
    s_sleep 4
    v_mov_b32 v{vTag}, 0
    buffer_load_dword v{vTag}, v{vTag}, s[{sDbg}:{sDbg+3}], 0 offen sc1
    s_waitcnt vmcnt(0)
    s_branch {L}_tg
    {L}_tgd:
    """)
def signal(p, L, sOff, need_tag):
    p(f"""
    s_waitcnt vmcnt(0)
    s_barrier
    s_cmp_lg_u32 s{sWave}, 0
    s_cbranch_scc1 {L}_sg
    """)
    if need_tag: tag_get(p, L)
    p(f"""
    v_mov_b32 v{t0}, 0
    v_mov_b32 v{t1}, s{sTag}
    s_mov_b64 exec, 1
    buffer_store_dword v{t1}, v{t0}, s[{sWS}:{sWS+3}], s{sOff} offen sc1
    s_mov_b64 exec, -1
    {L}_sg:
    """)
def wait_flags(p, L, sOff, n):
    p(f"""
    s_cmp_lg_u32 s{sWave}, 0
    s_cbranch_scc1 {L}_wd
    v_min_u32 v{t0}, {n-1}, v{vL}
    v_lshlrev_b32 v{t0}, 2, v{t0}
    s_mov_b32 s{sCnt}, 0
    {L}_wl:
    buffer_load_dword v{t1}, v{t0}, s[{sWS}:{sWS+3}], s{sOff} offen sc1
    s_add_u32 s{sCnt}, s{sCnt}, 1
    s_waitcnt vmcnt(0)
    v_cmp_ne_u32 vcc, s{sTag}, v{t1}
    s_cmp_gt_u32 s{sCnt}, {SPIN_MAX}
    s_cbranch_scc1 {L}_wd
    s_cbranch_vccz {L}_wd
    s_sleep 1
    s_branch {L}_wl
    {L}_wd:
    s_barrier
    """)
def tag_publish(p, L):
    F = 8
    p(f"""
    s_mov_b32 s{sT}, {WS_FL}
    s_waitcnt lgkmcnt(0)
    buffer_load_dwordx4 {vr(F,4)}, v{vL16}, s[{sWS}:{sWS+3}], s{sT} offen sc1
    buffer_load_dwordx4 {vr(F+4,4)}, v{vL16}, s[{sWS}:{sWS+3}], s{sT} offen offset:1024 sc1
    buffer_load_dwordx4 {vr(F+8,4)}, v{vL16}, s[{sWS}:{sWS+3}], s{sT} offen offset:2048 sc1
    s_waitcnt vmcnt(0)
    v_readfirstlane_b32 s{sTag}, v{F}
    {L}_tp:
    s_add_u32 s{sTag}, s{sTag}, 1
    s_cmp_eq_u32 s{sTag}, 0
    s_cbranch_scc1 {L}_tp
    s_mov_b64 s[50:51], 0
    """)
    for i in range(12):
        p(f"v_cmp_eq_u32 vcc, s{sTag}, v{F+i}")
        p(f"s_or_b64 s[50:51], s[50:51], vcc")
    p(f"""
    s_cmp_lg_u64 s[50:51], 0
    s_cbranch_scc1 {L}_tp
    v_mov_b32 v{t0}, 0
    v_mov_b32 v{vTag}, s{sTag}
    s_mov_b64 exec, 1
    buffer_store_dword v{vTag}, v{t0}, s[{sDbg}:{sDbg+3}], 0 offen sc1
    s_mov_b64 exec, -1
    """)

def qkv(p, L):
    sX, sW = 12, 16
    sMt, sHg, sXb, sWb, sU, sXo, sWo, sI, sMx, sMw = 20, 21, 22, 23, 24, 25, 26, 27, 28, 29
    V = Alloc(VB, 253)
    vX = V("vX"); vW = V("vW"); vAx = V("vAx", 4); vAw = V("vAw")
    XF = [V("xf0", 4, 4), V("xf1", 4, 4)]
    WF = [V("wf0", 12, 4), V("wf1", 12, 4)]
    ACC = V("acc", 48, 4)
    XR = 49152
    stamp(p, 0)
    ldsrd(p, sX, 0, 0x200000)
    ldsrd(p, sW, 8, 0x180000)
    p(f"""
    s_and_b32 s{sT}, s{sID}, 3
    s_lshl_b32 s{sMt}, s{sT}, 3
    s_bfe_u32 s{sT}, s{sID}, 0x30003
    s_add_u32 s{sMt}, s{sMt}, s{sT}
    s_and_b32 s{sHg}, s{sID}, 4
    s_lshr_b32 s{sT2}, s{sID}, 6
    s_add_u32 s{sHg}, s{sHg}, s{sT2}
    s_lshl_b32 s{sT2}, s{sT2}, 1
    s_add_u32 s{sU}, s{sT}, s{sT2}
    s_lshl_b32 s{sU}, s{sU}, 1
    s_lshl_b32 s{sXb}, s{sMt}, 16
    s_lshl_b32 s{sWb}, s{sHg}, 7
    v_lshrrev_b32 v{t0}, 3, v0
    v_lshlrev_b32 v{vX}, 10, v{t0}
    v_mul_u32_u24 v{vW}, 3072, v{t0}
    v_lshrrev_b32 v{t0}, 4, v0
    v_xor_b32 v{t1}, v{t0}, v{vL}
    v_and_b32 v{t1}, 7, v{t1}
    v_lshl_add_u32 v{vX}, v{t1}, 4, v{vX}
    v_lshlrev_b32 v{t0}, 2, v{t0}
    v_xor_b32 v{t1}, v{t0}, v{vL}
    v_and_b32 v{t1}, 7, v{t1}
    v_lshl_add_u32 v{vW}, v{t1}, 4, v{vW}
    s_lshl_b32 s{sMx}, s{sWave}, 10
    s_add_u32 s{sMx}, s{sMx}, {XR}
    s_mul_i32 s{sMw}, s{sWave}, 3072
    s_mov_b32 s{sI}, 0
    s_bfe_u32 s{sT}, s{sU}, 0x30001
    s_lshl_b32 s{sT}, s{sT}, 7
    s_add_u32 s{sXo}, s{sXb}, s{sT}
    s_mov_b32 m0, s{sMx}
    s_waitcnt lgkmcnt(0)
    """)
    stamp(p, 1)
    p(f"buffer_load_dwordx4 v{vX}, s[{sX}:{sX+3}], s{sXo} offen lds")
    def group(p, par, wslot):
        p(f"""
        s_and_b32 s{sT}, s{sU}, 15
        s_mul_i32 s{sWo}, s{sT}, {32*3072}
        s_add_u32 m0, s{sMw}, {wslot*12288}
        s_add_u32 s{sWo}, s{sWo}, s{sWb}
        buffer_load_dwordx4 v{vW}, s[{sW}:{sW+3}], s{sWo} offen lds
        buffer_load_dwordx4 v{vW}, s[{sW}:{sW+3}], s{sWo} offen offset:1024 lds
        buffer_load_dwordx4 v{vW}, s[{sW}:{sW+3}], s{sWo} offen offset:2048 lds
        s_add_u32 s{sU}, s{sU}, 1
        s_add_u32 s{sI}, s{sI}, 1
        s_bfe_u32 s{sT}, s{sU}, 0x30001
        s_lshl_b32 s{sT}, s{sT}, 7
        s_add_u32 s{sXo}, s{sXb}, s{sT}
        """)
        p(f"""
        s_and_b32 s{sT}, s{sI}, 7
        s_lshl_b32 s{sT}, s{sT}, 12
        s_add_u32 m0, s{sMx}, s{sT}
        """)
        if par == 0:
            p(f"s_add_u32 s{sXo}, s{sXo}, 32768")
        else:
            p(f"""
            s_cmp_eq_u32 s{sI}, 16
            s_cselect_b32 s{sXb}, {OOB}, s{sXb}
            s_cselect_b32 s{sXo}, {OOB}, s{sXo}
            s_cselect_b32 s{sWb}, {OOB}, s{sWb}
            """)
        p(f"buffer_load_dwordx4 v{vX}, s[{sX}:{sX+3}], s{sXo} offen lds")
    group(p, 0, 0); group(p, 1, 1); group(p, 0, 2)
    xfrag_addr(p, vAx)
    p(f"""
    v_lshrrev_b32 v{t0}, 1, v{vWv}
    v_lshl_add_u32 v{vAx}, v{t0}, 12, v{vAx}
    v_add_u32 v{vAx}, {XR}, v{vAx}
    v_xor_b32 v{vAx+1}, 32, v{vAx}
    v_xor_b32 v{vAx+2}, 64, v{vAx}
    v_xor_b32 v{vAx+3}, 96, v{vAx}
    """)
    tr_lane_addr(p, vAw, 3072, 128, 32)
    p(f"""
    v_lshrrev_b32 v{t0}, 3, v{vL}
    v_xor_b32 v{t0}, v{t0}, v{vWv}
    v_and_b32 v{t0}, 1, v{t0}
    v_lshl_add_u32 v{vAw}, v{t0}, 6, v{vAw}
    """)
    for i in range(48): p(f"v_mov_b32 v{ACC+i}, 0")
    for i in range(4): p(f"v_mov_b32 v{XF[1]+i}, 0")
    for i in range(12): p(f"v_mov_b32 v{WF[1]+i}, 0")
    def reads(p, u, ks, b):
        p(f"ds_read_b128 {vr(XF[b],4)}, v{vAx + 2*(u%2) + ks} offset:{(u//2)*8192}")
        for t in range(3):
            for ab in range(2):
                p(f"ds_read_b64_tr_b16 {vr(WF[b]+4*t+2*ab,2)}, v{vAw} offset:{u*12288 + ks*6144 + t*1024 + ab*512}")
    def mfmas(p, b):
        p(f"{MFMA} {vr(ACC,16)}, {vr(WF[b],4)}, {vr(XF[b],4)}, {vr(ACC,16)}")
        p(f"{MFMA} {vr(ACC+16,16)}, {vr(WF[b]+4,4)}, {vr(XF[b],4)}, {vr(ACC+16,16)}")
        p(f"{MFMA} {vr(ACC+32,16)}, {vr(XF[b],4)}, {vr(WF[b]+8,4)}, {vr(ACC+32,16)}")
    if STAMP:
        p("s_waitcnt vmcnt(8)")
        stamp(p, 2)
    p(f"{L}_loop:")
    for u in range(4):
        p("s_waitcnt vmcnt(8) lgkmcnt(0)")
        p("s_barrier")
        g = chunks(lines(group, (u+3) % 2, (u+3) % 4))
        r0 = lines(reads, u, 0, 0); r1 = lines(reads, u, 1, 1)
        for l in r0[:3]: p(l)
        weave(p, lines(mfmas, 1), (0, 1, r0[3:]), (0, 2, g[:2] + [["s_waitcnt lgkmcnt(0)"]]))
        weave(p, lines(mfmas, 0), (0, 2, r1), (0, 1, g[2:]))
    for i in range(4): p(f"v_xor_b32 v{vAx+i}, {49152 ^ 65536}, v{vAx+i}")
    p(f"""
    s_cmp_lt_u32 s{sI}, 19
    s_cbranch_scc1 {L}_loop
    s_waitcnt lgkmcnt(0)
    """)
    mfmas(p, 1)
    stamp(p, 3)
    tag_prefetch(p)
    sQ, sKV = 20, 22
    vKo, vVo = vX, vW
    p(f"""
    s_lshl_b32 s26, s{sHg}, 5
    s_add_u32 s26, s26, s{sMt}
    s_lshl_b32 s26, s26, 2
    s_add_u32 s26, s26, {FQ}
    s_lshl_b32 s{sT}, s{sMt}, 1
    s_lshr_b32 s{sT2}, s{sWave}, 1
    s_add_u32 s{sT}, s{sT}, s{sT2}
    s_lshl_b32 s{sT2}, s{sHg}, 8
    s_add_u32 s{sT}, s{sT}, s{sT2}
    s_and_b32 s{sT2}, s{sWave}, 1
    s_lshl_b32 s{sT2}, s{sT2}, 7
    s_add_u32 s{sT}, s{sT}, s{sT2}
    s_lshl_b32 s{sQ}, s{sT}, 10
    s_lshl_b32 s{sKV}, s{sT}, 11
    s_add_u32 s{sKV}, s{sKV}, {WS_KV}
    s_mov_b32 s24, {f32(0.25*LOG2E)}
    s_mov_b32 s25, {f32(0.25*LOG2E)}
    v_and_b32 v{t0}, 0x33, v{vL}
    v_and_b32 v{t1}, 4, v{vL}
    v_lshl_or_b32 v{t0}, v{t1}, 1, v{t0}
    v_and_b32 v{t1}, 8, v{vL}
    v_lshrrev_b32 v{t1}, 1, v{t1}
    v_or_b32 v{t0}, v{t0}, v{t1}
    v_lshlrev_b32 v{vKo}, 4, v{t0}
    v_and_b32 v{t1}, 15, v{vL}
    v_lshlrev_b32 v{vVo}, 4, v{t1}
    v_bfe_u32 v{t0}, v{vL}, 4, 1
    v_lshl_add_u32 v{vVo}, v{t0}, 17, v{vVo}
    v_lshrrev_b32 v{t0}, 5, v{vL}
    v_lshl_add_u32 v{vVo}, v{t0}, 8, v{vVo}
    s_add_u32 s{sT}, s{sQ}, 65536
    s_add_u32 s{sT2}, s{sKV}, 131072
    """)
    for t in (1, 2, 0):
        if t == 0:
            for i in range(8): p(f"v_pk_mul_f32 {vr(ACC+2*i,2)}, {vr(ACC+2*i,2)}, s[24:25]")
        for i in range(8):
            p(f"v_cvt_pk_bf16_f32 v{ACC+16*t+i}, v{ACC+16*t+2*i}, v{ACC+16*t+2*i+1}")
        if t == 0:
            p(f"buffer_store_dwordx4 {vr(ACC,4)}, v{vL16}, s[{sWS}:{sWS+3}], s{sQ} offen{C.sc}")
            p(f"buffer_store_dwordx4 {vr(ACC+4,4)}, v{vL16}, s[{sWS}:{sWS+3}], s{sT} offen{C.sc}")
        elif t == 1:
            p(f"buffer_store_dwordx4 {vr(ACC+16,4)}, v{vKo}, s[{sWS}:{sWS+3}], s{sKV} offen{C.sc}")
            p(f"buffer_store_dwordx4 {vr(ACC+20,4)}, v{vKo}, s[{sWS}:{sWS+3}], s{sT2} offen{C.sc}")
        else:
            p(f"buffer_store_dwordx4 {vr(ACC+32,4)}, v{vVo}, s[{sWS}:{sWS+3}], s{sKV} offen offset:1024{C.sc}")
            p(f"buffer_store_dwordx4 {vr(ACC+36,4)}, v{vVo}, s[{sWS}:{sWS+3}], s{sKV} offen offset:1536{C.sc}")
    if C.fused: signal(p, L, 26, True)
    stamp_out(p, 0)
    return V.next

def gate(p, L):
    sX, sG = 12, 40
    sI, sXo, sGo = 37, 38, 39
    V = Alloc(VB, 253)
    vA = V("a"); GW = V("gw", 4, 4); GX = V("gx", 8, 4)
    ldsrd(p, sG, 56, 1024)
    p(f"""
    s_lshl_b32 s{sXo}, s{sT3}, 2
    s_add_u32 s{sXo}, s{sXo}, s{sWave}
    s_lshl_b32 s{sGo}, s{sXo}, 4
    s_add_u32 s{sGo}, s{sGo}, {WS_G}
    s_lshl_b32 s{sXo}, s{sXo}, 12
    v_lshrrev_b32 v{vA}, 5, v{vL}
    v_lshlrev_b32 v{vA}, 2, v{vA}
    s_waitcnt lgkmcnt(0)
    buffer_load_dwordx4 {vr(GW,4)}, v{vL16}, s[{sG}:{sG+3}], 0 offen
    s_mov_b32 s{sI}, 0
    {L}_loop:
    buffer_load_dwordx4 {vr(GX,4)}, v{vL16}, s[{sX}:{sX+3}], s{sXo} offen
    buffer_load_dwordx4 {vr(GX+4,4)}, v{vL16}, s[{sX}:{sX+3}], s{sXo} offen offset:1024
    s_add_u32 s{sXo}, s{sXo}, 2048
    s_waitcnt vmcnt(0)
    v_dot2_f32_bf16 v{t0}, v{GX}, v{GW}, 0
    v_dot2_f32_bf16 v{t1}, v{GX+4}, v{GW}, 0
    """)
    for i in range(1, 4):
        p(f"v_dot2_f32_bf16 v{t0}, v{GX+i}, v{GW+i}, v{t0}")
        p(f"v_dot2_f32_bf16 v{t1}, v{GX+4+i}, v{GW+i}, v{t1}")
    p(f"""
    s_nop 3
    v_permlane32_swap_b32 v{t0}, v{t1}
    s_nop 1
    v_add_f32 v{t0}, v{t0}, v{t1}
    s_nop 1
    v_add_f32_dpp v{t0}, v{t0}, v{t0} row_ror:8 row_mask:0xf bank_mask:0xf
    s_nop 1
    v_add_f32_dpp v{t0}, v{t0}, v{t0} row_ror:4 row_mask:0xf bank_mask:0xf
    s_nop 1
    v_add_f32_dpp v{t0}, v{t0}, v{t0} row_ror:2 row_mask:0xf bank_mask:0xf
    s_nop 1
    v_add_f32_dpp v{t0}, v{t0}, v{t0} row_ror:1 row_mask:0xf bank_mask:0xf
    v_mov_b32 v{t1}, v{t0}
    s_nop 1
    v_permlane16_swap_b32 v{t0}, v{t1}
    s_nop 1
    v_add_f32 v{t0}, v{t0}, v{t1}
    v_cvt_pk_bf16_f32 v{t0}, v{t0}, v{t0}
    v_lshlrev_b32 v{t0}, 16, v{t0}
    v_mul_f32 v{t0}, {f32(-LOG2E)}, v{t0}
    v_exp_f32 v{t0}, v{t0}
    s_nop 0
    v_add_f32 v{t0}, 1.0, v{t0}
    v_rcp_f32 v{t0}, v{t0}
    s_nop 0
    v_cvt_pk_bf16_f32 v{t0}, v{t0}, v{t0}
    v_lshlrev_b32 v{t0}, 16, v{t0}
    buffer_store_dword v{t0}, v{vA}, s[{sWS}:{sWS+3}], s{sGo} offen{C.sc}
    s_add_u32 s{sGo}, s{sGo}, 8
    s_add_u32 s{sI}, s{sI}, 1
    s_cmp_lt_u32 s{sI}, 2
    s_cbranch_scc1 {L}_loop
    """)
    return V.next

def up(p, L):
    sX, sWg, sWu = 12, 16, 20
    sMt, sFt, sXb, sWb, sU, sXo, sWo, sI, sMx, sMw, sWs, sRd, sH = 24, 25, 26, 27, 28, 29, 30, 31, 32, 33, 34, 35, 36
    V = Alloc(VB, 253)
    vX = V("vX", 2); vW = V("vW", 4); vAx = V("vAx", 4); vAw0 = V("vAw0"); vAw = V("vAw", 4)
    XF = V("xf", 32, 4)
    WF = [V("wf0", 16, 4), V("wf1", 16, 4)]
    ACC = V("acc", 128, 4)
    XR = 49152
    p(f"""
    s_lshr_b32 s{sT2}, s{sID}, 3
    s_cmp_lt_u32 s{sT2}, 28
    s_cbranch_scc1 {L}_main
    """)
    if C.fused:
        p(f"""
        s_cmp_lg_u32 s{sWave}, 0
        s_cbranch_scc1 {L}_done
        s_waitcnt lgkmcnt(0)
        v_mov_b32 v{vTag}, 0
        s_cmp_lg_u32 s{sID}, 224
        s_cbranch_scc1 {L}_np
        """)
        tag_publish(p, L)
        p(f"{L}_np:")
        p("s_nop 0")
        tag_get(p, L + "_i")
    p(f"""
    s_branch {L}_done
    {L}_main:
    """)
    stamp(p, 0)
    ldsrd(p, sX, 0, 0x200000)
    ldsrd(p, sWg, 32, 512*3584)
    ldsrd(p, sWu, 40, 512*3584)
    p(f"""
    s_and_b32 s{sT}, s{sID}, 3
    s_lshl_b32 s{sMt}, s{sT}, 2
    s_and_b32 s{sT}, s{sT2}, 3
    s_add_u32 s{sMt}, s{sMt}, s{sT}
    s_bfe_u32 s{sFt}, s{sID}, 0x10002
    s_mul_i32 s{sFt}, s{sFt}, 7
    s_lshr_b32 s{sT2}, s{sT2}, 2
    s_add_u32 s{sFt}, s{sFt}, s{sT2}
    s_lshl_b32 s{sT}, s{sT}, 1
    s_add_u32 s{sU}, s{sT}, s{sT2}
    s_lshl_b32 s{sU}, s{sU}, 1
    s_lshl_b32 s{sXb}, s{sMt}, 17
    s_lshl_b32 s{sWb}, s{sFt}, 8
    s_cmp_ge_u32 s{sFt}, 8
    s_cbranch_scc1 {L}_ng
    s_lshl_b32 s{sT3}, s{sMt}, 3
    s_add_u32 s{sT3}, s{sT3}, s{sFt}
    """)
    ng = gate(p, L + "_g")
    p(f"""
    s_waitcnt vmcnt(0)
    {L}_ng:
    v_lshrrev_b32 v{t0}, 3, v{vL}
    v_lshl_add_u32 v{t0}, v{vWv}, 4, v{t0}
    v_lshlrev_b32 v{vX}, 10, v{t0}
    v_lshrrev_b32 v{t0}, 4, v{vL}
    v_xor_b32 v{t1}, v{t0}, v{vL}
    v_and_b32 v{t1}, 7, v{t1}
    v_lshl_add_u32 v{vX}, v{t1}, 4, v{vX}
    v_xor_b32 v{vX+1}, 64, v{vX}
    v_add_u32 v{vX+1}, 7168, v{vX+1}
    ; W dma: row = 8w + 4jj + lane/16 ; chunk = (lane%16) ^ ((2*(lane/16)+region)<<1)
    v_lshl_add_u32 v{t1}, v{vWv}, 3, v{t0}
    v_mul_u32_u24 v{vW}, 3584, v{t1}
    v_lshlrev_b32 v{t0}, 2, v{t0}
    v_xor_b32 v{t1}, v{t0}, v{vL}
    v_and_b32 v{t1}, 15, v{t1}
    v_lshl_add_u32 v{vW}, v{t1}, 4, v{vW}
    v_add_u32 v{vW+1}, {4*3584-1024}, v{vW}
    v_xor_b32 v{vW+2}, 32, v{vW}
    v_xor_b32 v{vW+3}, 32, v{vW+1}
    s_lshl_b32 s{sMw}, s{sWave}, 11
    s_add_u32 s{sMx}, s{sMw}, {XR}
    s_mov_b32 s{sWs}, s{sMw}
    s_mov_b32 s{sI}, 0
    s_bfe_u32 s{sT}, s{sU}, 0x30001
    s_lshl_b32 s{sT}, s{sT}, 7
    s_add_u32 s{sXo}, s{sXb}, s{sT}
    s_mov_b32 m0, s{sMx}
    s_waitcnt lgkmcnt(0)
    """)
    stamp(p, 1)
    p(f"buffer_load_dwordx4 v{vX}, s[{sX}:{sX+3}], s{sXo} offen lds")
    p(f"buffer_load_dwordx4 v{vX+1}, s[{sX}:{sX+3}], s{sXo} offen offset:1024 lds")
    def group(p, par):
        p(f"""
        s_and_b32 s{sT}, s{sU}, 15
        s_mul_i32 s{sWo}, s{sT}, {32*3584}
        s_mov_b32 m0, s{sWs}
        s_add_u32 s{sWo}, s{sWo}, s{sWb}
        buffer_load_dwordx4 v{vW}, s[{sWg}:{sWg+3}], s{sWo} offen lds
        buffer_load_dwordx4 v{vW+1}, s[{sWg}:{sWg+3}], s{sWo} offen offset:1024 lds
        s_add_u32 m0, s{sWs}, 8192
        s_add_u32 s{sU}, s{sU}, 1
        buffer_load_dwordx4 v{vW+2}, s[{sWu}:{sWu+3}], s{sWo} offen lds
        buffer_load_dwordx4 v{vW+3}, s[{sWu}:{sWu+3}], s{sWo} offen offset:1024 lds
        s_add_u32 s{sI}, s{sI}, 1
        s_add_u32 s{sWs}, s{sWs}, 16384
        s_cmp_ge_u32 s{sWs}, {XR}
        s_cselect_b32 s{sWs}, s{sMw}, s{sWs}
        s_bfe_u32 s{sT}, s{sU}, 0x30001
        s_lshl_b32 s{sT}, s{sT}, 7
        s_add_u32 s{sXo}, s{sXb}, s{sT}
        s_and_b32 s{sT}, s{sI}, 3
        s_lshl_b32 s{sT}, s{sT}, 13
        s_add_u32 m0, s{sMx}, s{sT}
        """)
        if par == 0:
            p(f"s_add_u32 s{sXo}, s{sXo}, 65536")
        else:
            p(f"""
            s_cmp_eq_u32 s{sI}, 16
            s_cselect_b32 s{sXb}, {OOB}, s{sXb}
            s_cselect_b32 s{sXo}, {OOB}, s{sXo}
            s_cselect_b32 s{sWb}, {OOB}, s{sWb}
            """)
        p(f"buffer_load_dwordx4 v{vX}, s[{sX}:{sX+3}], s{sXo} offen lds")
        p(f"buffer_load_dwordx4 v{vX+1}, s[{sX}:{sX+3}], s{sXo} offen offset:1024 lds")
    group(p, 0); group(p, 1)
    xfrag_addr(p, vAx)
    p(f"""
    v_lshrrev_b32 v{t0}, 1, v{vWv}
    v_lshl_add_u32 v{vAx}, v{t0}, 13, v{vAx}
    v_add_u32 v{vAx}, {XR}, v{vAx}
    v_xor_b32 v{vAx+1}, 32, v{vAx}
    v_xor_b32 v{vAx+2}, 64, v{vAx}
    v_xor_b32 v{vAx+3}, 96, v{vAx}
    """)
    tr_lane_addr(p, vAw0, 2048, 256, 8192)
    p(f"""
    v_bfe_u32 v{t0}, v{vL}, 2, 2
    v_bfe_u32 v{t1}, v{vL}, 4, 1
    v_lshl_or_b32 v{t0}, v{t0}, 1, v{t1}
    v_and_b32 v{t1}, 1, v{vWv}
    v_lshlrev_b32 v{t1}, 2, v{t1}
    v_xor_b32 v{t0}, v{t0}, v{t1}
    v_lshl_add_u32 v{vAw0}, v{t0}, 5, v{vAw0}
    s_mov_b32 s{sRd}, 0
    s_lshl_b32 s{sT}, s{sMt}, 2
    s_and_b32 s{sT2}, s{sWave}, 2
    s_add_u32 s{sT}, s{sT}, s{sT2}
    s_mul_i32 s{sH}, s{sT}, 112
    s_lshl_b32 s{sT}, s{sFt}, 3
    s_add_u32 s{sH}, s{sH}, s{sT}
    s_and_b32 s{sT}, s{sWave}, 1
    s_lshl_b32 s{sT}, s{sT}, 2
    s_add_u32 s{sH}, s{sH}, s{sT}
    s_lshl_b32 s{sH}, s{sH}, 10
    s_add_u32 s{sH}, s{sH}, {WS_H}
    """)
    for i in range(128): p(f"v_mov_b32 v{ACC+i}, 0")
    for i in range(16): p(f"v_mov_b32 v{WF[1]+i}, 0")
    for i in range(8): p(f"v_mov_b32 v{XF+24+i}, 0")
    def xreads(p, ks):
        for mi in range(2):
            p(f"ds_read_b128 {vr(XF+8*ks+4*mi,4)}, v{vAx+ks} offset:{mi*4096}")
    def wreads(p, ks, b):
        for tt in range(4):
            for ab in range(2):
                p(f"ds_read_b64_tr_b16 {vr(WF[b]+4*tt+2*ab,2)}, v{vAw+tt} offset:{ks*4096 + ab*1024}")
    def mfmas(p, b, ks4):
        for tt in range(4):
            for mi in range(2):
                A = ACC + 64*mi + 16*tt
                p(f"{MFMA} {vr(A,16)}, {vr(WF[b]+4*tt,4)}, {vr(XF+8*ks4+4*mi,4)}, {vr(A,16)}")
    if STAMP:
        p("s_waitcnt vmcnt(6)")
        stamp(p, 2)
    if C.prio: p("s_setprio 0")
    p(f"{L}_loop:")
    for par in range(2):
        p(f"v_add_u32 v{vAw}, s{sRd}, v{vAw0}")
        for tt in range(1, 4): p(f"v_xor_b32 v{vAw+tt}, {32*tt}, v{vAw}")
        p(f"""
        s_add_u32 s{sRd}, s{sRd}, 16384
        s_cmp_eq_u32 s{sRd}, {XR}
        s_cselect_b32 s{sRd}, 0, s{sRd}
        s_waitcnt vmcnt(6) lgkmcnt(0)
        s_barrier
        """)
        g = chunks(lines(group, par))
        r0 = (lines(xreads, 0) if par == 0 else []) + lines(wreads, 0, 0)
        r1 = lines(wreads, 1, 1) + (lines(xreads, 1) + lines(xreads, 2) + lines(xreads, 3) if par == 0 else [])
        weave(p, lines(mfmas, 1, 3 if par == 0 else 1), (0, 4, r0), (1, 6, g[:3]), (7, 7, ["s_waitcnt lgkmcnt(0)"]))
        weave(p, lines(mfmas, 0, 2*par), (0, 6, r1), (1, 6, g[3:]))
    for i in range(4): p(f"v_xor_b32 v{vAx+i}, {49152 ^ 65536}, v{vAx+i}")
    p(f"""
    s_cmp_lt_u32 s{sI}, 18
    s_cbranch_scc1 {L}_loop
    s_waitcnt lgkmcnt(0)
    """)
    mfmas(p, 1, 3)
    if C.prio: p("s_setprio 2")
    stamp(p, 3)
    tag_prefetch(p)
    c0 = -2.0*math.sqrt(2.0/math.pi)*LOG2E
    c1 = c0*0.044715
    p(f"""
    s_mov_b32 s40, {f32(c1)}
    s_mov_b32 s41, {f32(c1)}
    v_mov_b32 v{WF[0]}, {f32(c0)}
    v_mov_b32 v{WF[0]+1}, {f32(c0)}
    s_add_u32 s{sT}, s{sH}, {112*1024}
    s_nop 7
    """)
    T = WF[1]
    for tt in range(4):
      for mi in range(2):
        A = ACC + 64*mi + 16*tt
        for i in range(4): p(f"v_pk_mul_f32 {vr(T+2*i,2)}, {vr(A+2*i,2)}, {vr(A+2*i,2)}")
        for i in range(4): p(f"v_pk_fma_f32 {vr(T+2*i,2)}, {vr(T+2*i,2)}, s[40:41], {vr(WF[0],2)}")
        for i in range(4): p(f"v_pk_mul_f32 {vr(T+2*i,2)}, {vr(T+2*i,2)}, {vr(A+2*i,2)}")
        for i in range(8): p(f"v_exp_f32 v{T+i}, v{T+i}")
        for i in range(4): p(f"v_pk_mul_f32 {vr(A+2*i,2)}, {vr(A+2*i,2)}, {vr(A+8+2*i,2)}")
        for i in range(4): p(f"v_pk_add_f32 {vr(T+2*i,2)}, {vr(T+2*i,2)}, 1.0 op_sel_hi:[1,0]")
        for i in range(8): p(f"v_rcp_f32 v{T+i}, v{T+i}")
        p("s_nop 0")
        for i in range(4): p(f"v_pk_mul_f32 {vr(A+2*i,2)}, {vr(A+2*i,2)}, {vr(T+2*i,2)}")
        for i in range(4): p(f"v_cvt_pk_bf16_f32 v{A+8+i}, v{A+2*i}, v{A+2*i+1}")
        so = sH if mi == 0 else sT
        p(f"buffer_store_dwordx4 {vr(A+8,4)}, v{vL16}, s[{sWS}:{sWS+3}], s{so} offen offset:{tt*1024}{C.sc}")
    if C.fused:
        p(f"""
        s_lshl_b32 s{sT2}, s{sMt}, 4
        s_add_u32 s{sT2}, s{sT2}, s{sFt}
        s_lshl_b32 s{sT2}, s{sT2}, 2
        s_add_u32 s{sT2}, s{sT2}, {FH}
        """)
        signal(p, L, sT2, True)
    stamp_out(p, 1)
    p(f"{L}_done:")
    return max(V.next, ng)

def attn(p, L):
    NR = 4; CH = 16384
    sHead, sQb, sSrc, sDst, sC, sRd, sO, sFb = 12, 13, 14, 15, 16, 17, 18, 19
    sMask = 20
    V = Alloc(VB, 253)
    vDma = V("dma"); vV0 = V("vV0"); vK = V("vK"); vV = V("vV"); vIdx = V("idx")
    QA = V("QA", 4, 4); QB = V("QB", 4, 4)
    KF = [V(f"K{i}", 4, 4) for i in range(2)]
    VF = [V(f"V{i}", 8, 4) for i in range(4)]
    SA = [V(f"SA{i}", 16, 4) for i in range(2)]
    SB = [V(f"SB{i}", 16, 4) for i in range(2)]
    OA = V("OA", 16, 4); OB = V("OB", 16, 4); CA = V("CA", 16, 4); CB = V("CB", 16, 4)
    sQo, sFo, sFq = 23, 24, 25
    stamp(p, 0)
    p(f"""
    s_and_b32 s{sT}, s{sID}, 7
    s_lshl_b32 s{sFq}, s{sT}, 7
    s_add_u32 s{sFq}, s{sFq}, {FQ}
    s_lshr_b32 s{sT2}, s{sID}, 3
    s_lshl_b32 s{sHead}, s{sT}, 2
    s_and_b32 s{sT}, s{sT2}, 3
    s_add_u32 s{sHead}, s{sHead}, s{sT}
    s_lshr_b32 s{sQb}, s{sT2}, 2
    s_lshl_b32 s{sFo}, s{sQb}, 5
    s_add_u32 s{sFo}, s{sFo}, s{sHead}
    s_lshl_b32 s{sFo}, s{sFo}, 2
    s_add_u32 s{sFo}, s{sFo}, {FO}
    v_lshl_add_u32 v{vDma}, v{vWv}, 12, v{vL16}
    s_lshl_b32 s{sDst}, s{sWave}, 12
    s_lshl_b32 s{sT}, s{sQb}, 3
    s_lshl_b32 s{sT2}, s{sWave}, 1
    s_add_u32 s{sT}, s{sT}, s{sT2}
    s_lshl_b32 s{sO}, s{sT}, 15
    s_lshl_b32 s{sT2}, s{sHead}, 10
    s_add_u32 s{sO}, s{sO}, s{sT2}
    s_add_u32 s{sO}, s{sO}, {WS_O}
    s_lshl_b32 s{sT2}, s{sHead}, 6
    s_add_u32 s{sT}, s{sT}, s{sT2}
    s_lshl_b32 s{sQo}, s{sT}, 10
    s_lshl_b32 s{sHead}, s{sHead}, 17
    s_add_u32 s{sHead}, s{sHead}, {WS_KV}
    s_mov_b32 s{sSrc}, s{sHead}
    s_mov_b32 s{sC}, 0
    """)
    def setup():
        p(f"""
        s_mov_b32 s{sMask}, 0x0000ffff
        s_mov_b32 s{sMask+1}, 0x0000ffff
        v_mov_b32 v{vIdx}, 0xdddddddd
        v_mov_b32 v{vK}, v{vL16}
        v_and_b32 v{t0}, 15, v{vL}
        v_lshlrev_b32 v{t0}, 4, v{t0}
        v_lshrrev_b32 v{t1}, 5, v{vL}
        v_lshl_add_u32 v{vV0}, v{t1}, 8, v{t0}
        v_add_u32 v{vV0}, 1024, v{vV0}
        v_mov_b32 v{vV}, v{vV0}
        v_and_b32 v{t0}, 27, v{vL}
        v_cmp_eq_u32 vcc, 16, v{t0}
        v_mov_b32 v{t1}, 0x3f803f80
        s_nop 0
        v_cndmask_b32 v{t0}, 0, v{t1}, vcc
        """)
        for b in range(4):
            for i in range(8): p(f"v_mov_b32 v{VF[b]+i}, v{t0}")
        for i in range(16):
            p(f"v_mov_b32 v{OA+i}, 0")
            p(f"v_mov_b32 v{OB+i}, 0")
            p(f"v_mov_b32 v{SB[1]+i}, 0")
    if C.fused:
        setup()
        wait_flags(p, L, sFq, 32)
        dstamp(p, 3)
    else:
        p("s_waitcnt lgkmcnt(0)")
    stamp(p, 1)
    p(f"""
    buffer_load_dwordx4 {vr(QA,4)}, v{vL16}, s[{sWS}:{sWS+3}], s{sQo} offen{C.sc}
    buffer_load_dwordx4 {vr(QB,4)}, v{vL16}, s[{sWS}:{sWS+3}], s{sQo} offen offset:1024{C.sc}
    """)
    def dma():
        p(f"""
        s_mov_b32 m0, s{sDst}
        s_add_u32 s{sDst}, s{sDst}, {CH}
        buffer_load_dwordx4 v{vDma}, s[{sWS}:{sWS+3}], s{sSrc} offen{C.sc} lds
        buffer_load_dwordx4 v{vDma}, s[{sWS}:{sWS+3}], s{sSrc} offen offset:1024{C.sc} lds
        buffer_load_dwordx4 v{vDma}, s[{sWS}:{sWS+3}], s{sSrc} offen offset:2048{C.sc} lds
        buffer_load_dwordx4 v{vDma}, s[{sWS}:{sWS+3}], s{sSrc} offen offset:3072{C.sc} lds
        s_and_b32 s{sDst}, s{sDst}, {NR*CH-1}
        s_add_u32 s{sSrc}, s{sSrc}, {CH}
        """)
    p(f"{L}_pro:")
    dma()
    p(f"""
    s_add_u32 s{sC}, s{sC}, 1
    s_cmp_lt_u32 s{sC}, {NR}
    s_cbranch_scc1 {L}_pro
    """)
    if not C.fused: setup()
    def kread(j, b): p(f"ds_read_b128 {vr(KF[b],4)}, v{vK} offset:{j*2048}")
    def vread(j, b):
        p(f"s_mov_b64 exec, s[{sMask}:{sMask+1}]")
        p(f"ds_read_b128 {vr(VF[b],4)}, v{vV} offset:{j*2048}")
        p(f"ds_read_b128 {vr(VF[b]+4,4)}, v{vV} offset:{j*2048+512}")
        p(f"s_mov_b64 exec, -1")
    p(f"""
    s_waitcnt vmcnt({4*(NR-1)})
    s_barrier
    """)
    stamp(p, 2)
    kread(0, 0); kread(1, 1); vread(0, 0); vread(1, 1)
    p(f"""
    s_waitcnt lgkmcnt(5)
    {MFMA} {vr(SA[0],16)}, {vr(KF[0],4)}, {vr(QA,4)}, 0
    {MFMA} {vr(SB[0],16)}, {vr(KF[0],4)}, {vr(QB,4)}, 0
    s_nop 10
    """)
    def rowmax(S, T, first=True):
        if first:
            p(f"v_max3_f32 v{T}, v{S}, v{S+1}, v{S+2}")
            for i in range(3, 15, 2): p(f"v_max3_f32 v{T}, v{S+i}, v{S+i+1}, v{T}")
            p(f"v_max_f32 v{T}, v{S+15}, v{T}")
        else:
            for i in range(0, 16, 2): p(f"v_max3_f32 v{T}, v{S+i}, v{S+i+1}, v{T}")
    def bcast_neg(T, T2, Cc):
        p(f"""
        v_mov_b32 v{T2}, v{T}
        s_nop 1
        v_permlane32_swap_b32 v{T}, v{T2}
        s_nop 1
        v_max_f32 v{T}, v{T}, v{T2}
        """)
        for i in range(16): p(f"v_sub_f32 v{Cc+i}, 0, v{T}")
    rowmax(SA[0], t0); bcast_neg(t0, t1, CA)
    p("s_nop 1")
    p(f"{MFMA} {vr(SA[0],16)}, {vr(KF[0],4)}, {vr(QA,4)}, {vr(CA,16)}")
    rowmax(SB[0], t0); bcast_neg(t0, t1, CB)
    p(f"""
    s_mov_b32 s{sC}, 0
    s_mov_b32 s{sRd}, 0
    {MFMA} {vr(SB[0],16)}, {vr(KF[0],4)}, {vr(QB,4)}, {vr(CB,16)}
    s_branch {L}_mid
    """)
    POS = (0, 5, 10)
    def phase(S, mf, extra):
        for i in range(16):
            for k in range(3):
                if i == POS[k]:
                    p(mf[k])
                    if k in extra: extra[k]()
            p(f"v_exp_f32 v{S+i}, v{S+i}")
    def tile(j):
        tb = j % 2; vb = (j + 2) % 4; vprev = (j + 1) % 4
        mfA = [f"{SMF} {vr(OB,16)}, {vr(VF[vprev],4)}, {vr(SB[1-tb],8)}, v{vIdx}",
               f"{SMF} {vr(OB,16)}, {vr(VF[vprev]+4,4)}, {vr(SB[1-tb]+8,8)}, v{vIdx}",
               f"{MFMA} {vr(SA[1-tb],16)}, {vr(KF[1-tb],4)}, {vr(QA,4)}, {vr(CA,16)}"]
        mfB = [f"{SMF} {vr(OA,16)}, {vr(VF[vb],4)}, {vr(SA[tb],8)}, v{vIdx}",
               f"{SMF} {vr(OA,16)}, {vr(VF[vb]+4,4)}, {vr(SA[tb]+8,8)}, v{vIdx}",
               f"{MFMA} {vr(SB[1-tb],16)}, {vr(KF[1-tb],4)}, {vr(QB,4)}, {vr(CB,16)}"]
        def kr():
            p("s_waitcnt lgkmcnt(0)")
            kread(j, tb)
        phase(SA[tb], mfA, {0: kr})
        phase(SB[tb], mfB, {1: lambda: vread(j, j % 4)})
    p(f"{L}_top:")
    p(f"""
    s_add_u32 s{sRd}, s{sRd}, {CH}
    s_and_b32 s{sRd}, s{sRd}, {NR*CH-1}
    v_add_u32 v{vK}, s{sRd}, v{vL16}
    v_add_u32 v{vV}, s{sRd}, v{vV0}
    s_cmp_ge_u32 s{sC}, {8-NR+1}
    s_cbranch_scc1 {L}_nodma
    s_waitcnt vmcnt({4*(NR-2)}) lgkmcnt(0)
    s_barrier
    """)
    dma()
    p(f"""
    s_branch {L}_go
    {L}_nodma:
    s_waitcnt vmcnt(0) lgkmcnt(0)
    s_barrier
    {L}_go:
    """)
    tile(0); tile(1)
    p(f"""
    s_cmp_eq_u32 s{sC}, 8
    s_cbranch_scc1 {L}_fin
    {L}_mid:
    """)
    for j in range(2, 8): tile(j)
    p(f"""
    s_add_u32 s{sC}, s{sC}, 1
    s_branch {L}_top
    {L}_fin:
    s_nop 1
    {SMF} {vr(OB,16)}, {vr(VF[3],4)}, {vr(SB[1],8)}, v{vIdx}
    {SMF} {vr(OB,16)}, {vr(VF[3]+4,4)}, {vr(SB[1]+8,8)}, v{vIdx}
    s_mov_b32 s{sFb}, 0
    s_waitcnt lgkmcnt(0)
    s_nop 12
    """)
    stamp(p, 3)
    p(f"""
    v_add_f32 v{t1}, v{OA+8}, v{OB+8}
    """)
    for i in range(8):
        p(f"v_fmac_f32 v{t1}, 0, v{OA+i}")
        p(f"v_fmac_f32 v{t1}, 0, v{OB+i}")
    p(f"""
    v_cmp_nge_f32 vcc, {f32(2.0**30)}, v{t1}
    s_nop 1
    s_cbranch_vccz {L}_out
    """)
    sK = 22
    p(f"""
    v_mov_b32 v{CA}, 0xff800000
    v_mov_b32 v{CB}, 0xff800000
    s_mov_b32 s{sK}, s{sHead}
    s_mov_b32 s{sC}, 0
    {L}_fb1:
    buffer_load_dwordx4 {vr(KF[0],4)}, v{vL16}, s[{sWS}:{sWS+3}], s{sK} offen{C.sc}
    s_waitcnt vmcnt(0)
    {MFMA} {vr(SA[0],16)}, {vr(KF[0],4)}, {vr(QA,4)}, 0
    {MFMA} {vr(SB[0],16)}, {vr(KF[0],4)}, {vr(QB,4)}, 0
    s_nop 15
    """)
    rowmax(SA[0], CA, False)
    rowmax(SB[0], CB, False)
    p(f"""
    s_add_u32 s{sK}, s{sK}, 2048
    s_add_u32 s{sC}, s{sC}, 1
    s_cmp_lt_u32 s{sC}, 64
    s_cbranch_scc1 {L}_fb1
    v_mov_b32 v{t0}, v{CA}
    """)
    bcast_neg(t0, t1, CA)
    p(f"v_mov_b32 v{t0}, v{CB}")
    bcast_neg(t0, t1, CB)
    for i in range(16):
        p(f"v_mov_b32 v{OA+i}, 0")
        p(f"v_mov_b32 v{OB+i}, 0")
    p(f"""
    s_mov_b32 s{sK}, s{sHead}
    s_mov_b32 s{sC}, 0
    {L}_fb2:
    buffer_load_dwordx4 {vr(KF[0],4)}, v{vL16}, s[{sWS}:{sWS+3}], s{sK} offen{C.sc}
    s_mov_b64 exec, s[{sMask}:{sMask+1}]
    buffer_load_dwordx4 {vr(VF[0],4)}, v{vV0}, s[{sWS}:{sWS+3}], s{sK} offen{C.sc}
    buffer_load_dwordx4 {vr(VF[0]+4,4)}, v{vV0}, s[{sWS}:{sWS+3}], s{sK} offen offset:512{C.sc}
    s_mov_b64 exec, -1
    s_waitcnt vmcnt(0)
    {MFMA} {vr(SA[0],16)}, {vr(KF[0],4)}, {vr(QA,4)}, {vr(CA,16)}
    {MFMA} {vr(SB[0],16)}, {vr(KF[0],4)}, {vr(QB,4)}, {vr(CB,16)}
    s_nop 15
    """)
    for i in range(16): p(f"v_exp_f32 v{SA[0]+i}, v{SA[0]+i}")
    for i in range(16): p(f"v_exp_f32 v{SB[0]+i}, v{SB[0]+i}")
    p(f"""
    s_nop 2
    {SMF} {vr(OA,16)}, {vr(VF[0],4)}, {vr(SA[0],8)}, v{vIdx}
    {SMF} {vr(OA,16)}, {vr(VF[0]+4,4)}, {vr(SA[0]+8,8)}, v{vIdx}
    {SMF} {vr(OB,16)}, {vr(VF[0],4)}, {vr(SB[0],8)}, v{vIdx}
    {SMF} {vr(OB,16)}, {vr(VF[0]+4,4)}, {vr(SB[0]+8,8)}, v{vIdx}
    s_add_u32 s{sK}, s{sK}, 2048
    s_add_u32 s{sC}, s{sC}, 1
    s_cmp_lt_u32 s{sC}, 64
    s_cbranch_scc1 {L}_fb2
    s_nop 15
    {L}_out:
    """)
    def fin(O, off):
        p(f"v_rcp_f32 v{t0}, v{O+8}")
        p("s_nop 0")
        for i in range(8): p(f"v_mul_f32 v{O+i}, v{O+i}, v{t0}")
        for i in range(4): p(f"v_cvt_pk_bf16_f32 v{O+i}, v{O+2*i}, v{O+2*i+1}")
        p(f"buffer_store_dwordx4 {vr(O,4)}, v{vL16}, s[{sWS}:{sWS+3}], s{off} offen{C.sc if C.tail else ''}")
    p(f"s_add_u32 s{sT}, s{sO}, 32768")
    fin(OA, sO)
    fin(OB, sT)
    if C.tail: signal(p, L + "_o", sFo, False)
    stamp_out(p, 2)
    return V.next

def down(p, L, final):
    KT = 32 if final else 112
    NST = KT // 8
    NS = 4
    tail = C.tail and not final
    sW, sOut, sWo = 12, 16, 28
    sMt, sNt, sWoff, sM0, sXoff, sS, sB, sR = 20, 21, 22, 23, 24, 25, 26, 27
    V = Alloc(VB, 253)
    vL16b = V("l16b"); vW = V("vW", 4); vAw = V("vAw", 2); vG = V("g", 4, 2); vOut = V("vOut")
    XF = [V(f"xf{i}", 16, 4) for i in range(NS)]
    WF = [V("wf0", 8, 4), V("wf1", 8, 4)]
    ACC = V("acc", 64, 4)
    if tail: AC2 = V("ac2", 64, 4)
    else: BF = V("bf", 8, 4)
    sc = "" if final else C.sc
    stamp(p, 0)
    ldsrd(p, sW, 16 if final else 48, KT*16*1024)
    if final or tail: ldsrd(p, sOut, 64, 0x200000)
    if tail: ldsrd(p, sWo, 16, 512*1024)
    p(f"""
    s_and_b32 s{sT}, s{sID}, 7
    s_lshl_b32 s{sMt}, s{sT}, 2
    s_bfe_u32 s{sT}, s{sID}, 0x20003
    s_add_u32 s{sMt}, s{sMt}, s{sT}
    s_lshr_b32 s{sNt}, s{sID}, 5
    v_add_u32 v{vL16b}, {KT*1024}, v{vL16}
    v_lshrrev_b32 v{t0}, 3, v{vL}
    v_lshlrev_b32 v{t0}, 10, v{t0}
    v_bfe_u32 v{t1}, v{vL}, 4, 1
    v_lshlrev_b32 v{t1}, 2, v{t1}
    v_xor_b32 v{t1}, v{t1}, v{vL}
    v_and_b32 v{t1}, 7, v{t1}
    v_lshl_add_u32 v{vW}, v{t1}, 4, v{t0}
    v_add_u32 v{vW+1}, 7168, v{vW}
    v_add_u32 v{vW+2}, {2*7168}, v{vW}
    v_add_u32 v{vW+3}, {3*7168}, v{vW}
    """)
    if final:
        p(f"""
        s_add_u32 s{sR}, s{sNt}, s{sT}
        s_and_b32 s{sR}, s{sR}, 3
        """)
    else:
        p(f"""
        s_mul_i32 s{sR}, s{sNt}, 7
        s_lshr_b32 s{sR}, s{sR}, 2
        s_mul_i32 s{sT}, s{sT}, 7
        s_lshr_b32 s{sT}, s{sT}, 1
        s_add_u32 s{sR}, s{sR}, s{sT}
        s_sub_u32 s{sT}, s{sR}, 14
        s_cmp_ge_u32 s{sR}, 14
        s_cselect_b32 s{sR}, s{sT}, s{sR}
        """)
    p(f"""
    s_mul_i32 s{sT}, s{sWave}, {NST}
    s_add_u32 s{sT}, s{sT}, s{sR}
    s_lshl_b32 s{sWoff}, s{sT}, 15
    s_lshl_b32 s{sT2}, s{sNt}, 7
    s_add_u32 s{sWoff}, s{sWoff}, s{sT2}
    s_lshl_b32 s{sM0}, s{sWave}, 14
    s_mul_i32 s{sXoff}, s{sMt}, {2*KT*1024}
    s_lshl_b32 s{sT}, s{sT}, 11
    s_add_u32 s{sXoff}, s{sXoff}, s{sT}
    s_add_u32 s{sXoff}, s{sXoff}, {WS_O if final else WS_H}
    s_lshl_b32 s{sB}, s{sID}, 13
    s_lshl_b32 s{sT}, s{sWave}, 11
    s_add_u32 s{sB}, s{sB}, s{sT}
    s_add_u32 s{sB}, s{sB}, {WS_B}
    """)
    def outaddr():
        p(f"""
        v_and_b32 v{t0}, 31, v{vL}
        v_lshrrev_b32 v{t1}, 1, v{vWv}
        v_lshl_add_u32 v{t0}, v{t1}, 5, v{t0}
        v_lshlrev_b32 v{vOut}, 10, v{t0}
        v_and_b32 v{t1}, 1, v{vWv}
        v_lshl_add_u32 v{vOut}, v{t1}, 6, v{vOut}
        v_lshrrev_b32 v{t1}, 5, v{vL}
        v_lshl_add_u32 v{vOut}, v{t1}, 4, v{vOut}
        """)
    def setup():
        tr_lane_addr(p, vAw, 1024, 128, 32)
        p(f"""
        v_bfe_u32 v{t0}, v{vL}, 3, 1
        v_lshl_add_u32 v{vAw}, v{t0}, 6, v{vAw}
        v_lshl_add_u32 v{vAw}, v{vWv}, 14, v{vAw}
        v_xor_b32 v{vAw+1}, 64, v{vAw}
        """)
        for i in range(64): p(f"v_mov_b32 v{ACC+i}, 0")
        if not final:
            for i in range(8): p(f"v_mov_b32 v{WF[1]+i}, 0")
            for i in range(8): p(f"v_mov_b32 v{XF[3]+8+i}, 0")
    fusedw = C.fused and not final
    if fusedw:
        setup()
        if tail: outaddr()
        p(f"""
        s_lshr_b32 s{sT3}, s{sMt}, 1
        s_lshl_b32 s{sT3}, s{sT3}, 6
        s_add_u32 s{sT3}, s{sT3}, {FH}
        s_waitcnt lgkmcnt(0)
        """)
        wait_flags(p, L, sT3, 14)
        if C.prio: p("s_setprio 0")
    else:
        p("s_waitcnt lgkmcnt(0)")
    stamp(p, 1)
    def wdma(p, srdw, soff):
        for j in range(4):
            p(f"buffer_load_dwordx4 v{vW+j}, s[{srdw}:{srdw+3}], s{soff} offen offset:{j*1024} lds")
    def dma(p, u):
        p(f"""
        s_add_u32 m0, s{sM0}, {u*4096}
        buffer_load_dwordx4 {vr(XF[u],4)}, v{vL16}, s[{sWS}:{sWS+3}], s{sXoff} offen{sc}
        buffer_load_dwordx4 v{vW}, s[{sW}:{sW+3}], s{sWoff} offen lds
        buffer_load_dwordx4 v{vW+1}, s[{sW}:{sW+3}], s{sWoff} offen offset:1024 lds
        buffer_load_dwordx4 {vr(XF[u]+4,4)}, v{vL16b}, s[{sWS}:{sWS+3}], s{sXoff} offen{sc}
        buffer_load_dwordx4 v{vW+2}, s[{sW}:{sW+3}], s{sWoff} offen offset:2048 lds
        buffer_load_dwordx4 v{vW+3}, s[{sW}:{sW+3}], s{sWoff} offen offset:3072 lds
        buffer_load_dwordx4 {vr(XF[u]+8,4)}, v{vL16}, s[{sWS}:{sWS+3}], s{sXoff} offen offset:1024{sc}
        buffer_load_dwordx4 {vr(XF[u]+12,4)}, v{vL16b}, s[{sWS}:{sWS+3}], s{sXoff} offen offset:1024{sc}
        s_add_u32 s{sR}, s{sR}, 1
        s_cmp_eq_u32 s{sR}, {NST}
        s_cselect_b32 s{sT}, {1-NST}, 1
        s_lshl_b32 s{sT2}, s{sT}, 15
        s_add_u32 s{sWoff}, s{sWoff}, s{sT2}
        s_lshl_b32 s{sT2}, s{sT}, 11
        s_add_u32 s{sXoff}, s{sXoff}, s{sT2}
        """)
    npro = NS if final else NS-1
    for i in range(npro): dma(p, i)
    if final:
        outaddr()
        p(f"""
        v_lshlrev_b32 v{t1}, 2, v{t0}
        s_lshl_b32 s{sT}, s{sMt}, 8
        s_add_u32 s{sT}, s{sT}, {WS_G}
        buffer_load_dword v{vG}, v{t1}, s[{sWS}:{sWS+3}], s{sT} offen
        buffer_load_dwordx4 {vr(BF,4)}, v{vL16}, s[{sWS}:{sWS+3}], s{sB} offen
        buffer_load_dwordx4 {vr(BF+4,4)}, v{vL16}, s[{sWS}:{sWS+3}], s{sB} offen offset:1024
        """)
    if not fusedw: setup()
    def reads(p, u, ks, b):
        for t in range(2):
            for ab in range(2):
                p(f"ds_read_b64_tr_b16 {vr(WF[b]+4*t+2*ab,2)}, v{vAw+t} offset:{u*4096 + ks*2048 + ab*512}")
    def mfmas(p, b, xf, acc=ACC, zero=False):
        for mi in range(2):
            for t in range(2):
                A = acc + 16*(2*mi+t)
                p(f"{MFMA} {vr(A,16)}, {vr(WF[b]+4*t,4)}, {vr(xf+4*mi,4)}, {'0' if zero else vr(A,16)}")
    if STAMP:
        p(f"s_waitcnt vmcnt({27 if final else 16})")
        stamp(p, 2)
    if final:
        for u in range(4):
            p(f"s_waitcnt vmcnt({8*(3-u)+3})")
            reads(p, u, 0, 0)
            reads(p, u, 1, 1)
            p("s_waitcnt lgkmcnt(4)")
            mfmas(p, 0, XF[u])
            p("s_waitcnt lgkmcnt(0)")
            mfmas(p, 1, XF[u]+8)
    else:
        p(f"s_mov_b32 s{sS}, 0")
        p(f"{L}_loop:")
        for u in range(4):
            p(f"s_waitcnt vmcnt({8*(NS-2)}) lgkmcnt(0)")
            reads(p, u, 0, 0)
            mfmas(p, 1, XF[(u+3) % 4]+8)
            if u == 2:
                p(f"""
                s_cmp_eq_u32 s{sS}, 3
                s_cbranch_scc1 {L}_done
                """)
            if u == 3:
                p(f"""
                s_cmp_eq_u32 s{sS}, 2
                s_cselect_b32 s{sXoff}, {OOB}, s{sXoff}
                s_cselect_b32 s{sWoff}, {OOB}, s{sWoff}
                """)
            reads(p, u, 1, 1)
            p("s_waitcnt lgkmcnt(4)")
            weave(p, lines(mfmas, 0, XF[u]), (0, 3, chunks(lines(dma, (u+3) % 4))))
        p(f"""
        s_add_u32 s{sS}, s{sS}, 1
        s_branch {L}_loop
        {L}_done:
        """)
    stamp(p, 3)
    if tail:
        dstamp(p, 6)
        if C.prio: p("s_setprio 2")
        p(f"""
        s_waitcnt vmcnt(0) lgkmcnt(0)
        s_lshl_b32 s{sWoff}, s{sWave}, 17
        s_lshl_b32 s{sT2}, s{sNt}, 7
        s_add_u32 s{sWoff}, s{sWoff}, s{sT2}
        v_and_b32 v{t0}, 31, v{vL}
        v_lshlrev_b32 v{t1}, 2, v{t0}
        s_lshl_b32 s{sT}, s{sMt}, 8
        s_add_u32 s{sT}, s{sT}, {WS_G}
        buffer_load_dword v{vG}, v{t1}, s[{sWS}:{sWS+3}], s{sT} offen sc1
        buffer_load_dword v{vG+2}, v{t1}, s[{sWS}:{sWS+3}], s{sT} offen offset:128 sc1
        """)
        for u in range(4):
            p(f"s_add_u32 m0, s{sM0}, {u*4096}")
            p("s_nop 0")
            wdma(p, sWo, sWoff)
            p(f"s_add_u32 s{sWoff}, s{sWoff}, 32768")
        p(f"""
        s_lshl_b32 s{sXoff}, s{sMt}, 16
        s_lshl_b32 s{sT}, s{sWave}, 13
        s_add_u32 s{sXoff}, s{sXoff}, s{sT}
        s_add_u32 s{sXoff}, s{sXoff}, {WS_O}
        v_add_u32 v{vL16b}, 32768, v{vL16}
        s_lshr_b32 s{sT3}, s{sMt}, 2
        s_lshl_b32 s{sT3}, s{sT3}, 7
        s_add_u32 s{sT3}, s{sT3}, {FO}
        s_waitcnt vmcnt(16)
        """)
        for mi in range(2):
            p(f"""
            v_sub_f32 v{t0}, 1.0, v{vG+2*mi}
            v_cvt_pk_bf16_f32 v{t0}, v{t0}, v{t0}
            v_lshlrev_b32 v{t0}, 16, v{t0}
            v_mov_b32 v{vG+2*mi+1}, v{vG+2*mi}
            """)
            for i in range(32): p(f"v_mul_f32 v{ACC+32*mi+i}, v{ACC+32*mi+i}, v{t0}")
        wait_flags(p, L + "_o", sT3, 32)
        stamp(p, 5)
        for u in range(4):
            p(f"buffer_load_dwordx4 {vr(XF[u],4)}, v{vL16}, s[{sWS}:{sWS+3}], s{sXoff} offen offset:{(u%2)*2048} sc1")
            p(f"buffer_load_dwordx4 {vr(XF[u]+4,4)}, v{vL16b}, s[{sWS}:{sWS+3}], s{sXoff} offen offset:{(u%2)*2048} sc1")
            p(f"buffer_load_dwordx4 {vr(XF[u]+8,4)}, v{vL16}, s[{sWS}:{sWS+3}], s{sXoff} offen offset:{(u%2)*2048+1024} sc1")
            p(f"buffer_load_dwordx4 {vr(XF[u]+12,4)}, v{vL16b}, s[{sWS}:{sWS+3}], s{sXoff} offen offset:{(u%2)*2048+1024} sc1")
            if u == 1: p(f"s_add_u32 s{sXoff}, s{sXoff}, 4096")
        p("s_waitcnt vmcnt(16)")
        reads(p, 0, 0, 0)
        for u in range(4):
            reads(p, u, 1, 1)
            p(f"s_waitcnt vmcnt({4*(3-u)+2}) lgkmcnt(4)")
            mfmas(p, 0, XF[u], AC2, u == 0)
            if u < 3: reads(p, u+1, 0, 0)
            p(f"s_waitcnt vmcnt({4*(3-u)}) lgkmcnt({4 if u < 3 else 0})")
            mfmas(p, 1, XF[u]+8, AC2)
        stamp(p, 6)
        p("s_nop 9")
        for j in range(4):
            for i in range(8):
                p(f"v_pk_fma_f32 {vr(ACC+16*j+2*i,2)}, {vr(AC2+16*j+2*i,2)}, {vr(vG+2*(j//2),2)}, {vr(ACC+16*j+2*i,2)}")
    p(f"""
    s_waitcnt vmcnt(0) lgkmcnt(0)
    s_barrier
    v_lshl_add_u32 v{t0}, v{vWv}, 12, v{vL16}
    v_lshl_add_u32 v{t1}, v{vWv}, 14, v{vL16}
    s_nop 9
    """)
    for j in range(4):
        for q in range(4):
            p(f"ds_write_b128 v{t0}, {vr(ACC+16*j+4*q,4)} offset:{j*16384 + q*1024}")
    p(f"""
    s_waitcnt lgkmcnt(0)
    s_barrier
    """)
    for w in range(4):
        for q in range(4):
            p(f"ds_read_b128 {vr(ACC+16*w+4*q,4)}, v{t1} offset:{w*4096 + q*1024}")
    p("s_waitcnt lgkmcnt(8)")
    for i in range(8): p(f"v_pk_add_f32 {vr(ACC+2*i,2)}, {vr(ACC+2*i,2)}, {vr(ACC+16+2*i,2)}")
    p("s_waitcnt lgkmcnt(0)")
    for i in range(8): p(f"v_pk_add_f32 {vr(ACC+32+2*i,2)}, {vr(ACC+32+2*i,2)}, {vr(ACC+48+2*i,2)}")
    for i in range(8): p(f"v_pk_add_f32 {vr(ACC+2*i,2)}, {vr(ACC+2*i,2)}, {vr(ACC+32+2*i,2)}")
    if final or tail:
        p(f"""
        s_lshl_b32 s{sT}, s{sMt}, 16
        s_lshl_b32 s{sT2}, s{sNt}, 7
        s_add_u32 s{sT}, s{sT}, s{sT2}
        """)
    if final:
        p(f"""
        v_sub_f32 v{t0}, 1.0, v{vG}
        v_cvt_pk_bf16_f32 v{t0}, v{t0}, v{t0}
        v_lshlrev_b32 v{t0}, 16, v{t0}
        """)
        for i in range(8):
            p(f"v_lshlrev_b32 v{ACC+16+2*i}, 16, v{BF+i}")
            p(f"v_and_b32 v{ACC+17+2*i}, 0xffff0000, v{BF+i}")
        for i in range(16):
            p(f"v_mul_f32 v{ACC+i}, v{ACC+i}, v{vG}")
            p(f"v_fmac_f32 v{ACC+i}, v{ACC+16+i}, v{t0}")
    for i in range(8): p(f"v_cvt_pk_bf16_f32 v{ACC+i}, v{ACC+2*i}, v{ACC+2*i+1}")
    if final or tail:
        p(f"buffer_store_dwordx4 {vr(ACC,4)}, v{vOut}, s[{sOut}:{sOut+3}], s{sT} offen")
        p(f"buffer_store_dwordx4 {vr(ACC+4,4)}, v{vOut}, s[{sOut}:{sOut+3}], s{sT} offen offset:32")
    else:
        p(f"buffer_store_dwordx4 {vr(ACC,4)}, v{vL16}, s[{sWS}:{sWS+3}], s{sB} offen")
        p(f"buffer_store_dwordx4 {vr(ACC+4,4)}, v{vL16}, s[{sWS}:{sWS+3}], s{sB} offen offset:1024")
    stamp_out(p, 4 if final else 3, 8 if tail else 5)
    return V.next

def single(name, body):
    p = Prog()
    p(f"""
    s_cmp_ge_u32 s2, 256
    s_cbranch_scc1 {name}_end
    s_mov_b32 s{sID}, s2
    """)
    common(p)
    nv = body(p, name)
    p(f"{name}_end:")
    p("s_endpgm")
    return (name, p.text(), nv, LDS_WG, 256)
def dual(name, a, b):
    p = Prog()
    p(f"""
    s_cmp_ge_u32 s2, 512
    s_cbranch_scc1 {name}_end
    s_and_b32 s{sID}, s2, 255
    """)
    common(p)
    p(f"""
    s_cmp_ge_u32 s2, 256
    s_cbranch_scc1 {name}_b
    """)
    na = a(p, name + "_A")
    p(f"{name}_end:")
    p("s_endpgm")
    p(f"{name}_b:")
    nb = b(p, name + "_B")
    p("s_endpgm")
    return (name, p.text(), max(na, nb, 129), LDS_WG, 512)

def emit(ks, path):
    out = "; generated by gen3.py (hand-written generator)\n"
    for n, txt, nv, lds, g in ks:
        out += f"; @launch kernel={n} grid=({g},1,1) block=(256,1,1) lds={lds}\n"
    out += '.amdgcn_target "amdgcn-amd-amdhsa--gfx950"\n.text\n'
    for n, txt, nv, lds, g in ks: out += kernel_header(n) + txt
    out += '.section .rodata,"a"\n'
    for n, txt, nv, lds, g in ks:
        out += ".p2align 6\n" + kernel_desc(n, nv)
        print(n, "vgprs", nv, "lds", lds, "lines", txt.count("\n"), file=sys.stderr)
    open(path, "w").write(out)

dn = lambda p, L: down(p, L, False)
fn = lambda p, L: down(p, L, True)
def build(cfg, path):
    if cfg == "sep":
        ks = [single("qkv_kernel", qkv), single("up_kernel", up), single("attn_kernel", attn), single("down_kernel", dn), single("fin_kernel", fn)]
    elif cfg == "B3":
        ks = [dual("k1_kernel", qkv, up), dual("k2_kernel", attn, dn), single("fin_kernel", fn)]
    elif cfg in ("P2", "P1"):
        C.fused = True; C.sc = " sc1"; C.tail = cfg == "P1"; C.prio = int(os.environ.get("PRIO", "0"))
        def A(p, L):
            dstamp(p, 1, True); a = qkv(p, L + "q"); dstamp(p, 2); b = attn(p, L + "a"); dstamp(p, 4)
            return max(a, b, 256)
        def B(p, L):
            a = up(p, L + "u"); dstamp(p, 5); b = dn(p, L + "d")
            if DSTAMP: p("s_waitcnt vmcnt(0)")
            dstamp(p, 7)
            return max(a, b)
        ks = [dual(NAME + "_kernel", A, B)]
        if cfg == "P2":
            C.fused = False; C.sc = ""
            ks.append(single("fin_kernel", fn))
    elif cfg == "q2":
        k = single("qkv_kernel", qkv); ks = [k]; rep = 3
    elif cfg == "u2":
        k = single("up_kernel", up); ks = [k]; rep = 3
    elif cfg == "d2":
        k = single("down_kernel", dn); ks = [k]; rep = 3
    elif cfg == "f2":
        k = single("fin_kernel", fn); ks = [k]; rep = 3
    emit(ks, path)
    if cfg[1] == "2" and cfg[0] != "P":
        t = open(path).read().split("\n")
        t = [t[0], t[1], t[1]] + t[1:]
        open(path, "w").write("\n".join(t))

if __name__ == "__main__":
    build(sys.argv[1], sys.argv[2] if len(sys.argv) > 2 else f"cdna_kernels/{NAME}.s")
```

```python
import sys, math, os, struct
from asmlib import *

NAME = "gated_mix__softmax_full_mha__geglu_ffn__prompt"
WS_Q  = 0
WS_KV = 2 << 20
WS_H  = 8 << 20
WS_O  = 16 << 20
WS_B  = 18 << 20
WS_G  = 20 << 20
WS_FL = (20 << 20) + 0x10000
WS_ST = (20 << 20) + 0x80000
WS_USED = 22 << 20
OOB = 0x40000000
LOG2E = 1.4426950408889634
def f32(x): return "0x%08x" % struct.unpack("<I", struct.pack("<f", x))[0]
STAMP = int(os.environ.get("STAMP", "0"))
MFMA = "v_mfma_f32_32x32x16_bf16"
SMF = "v_smfmac_f32_32x32x32_bf16"
LDS_WG = 81920

sID = 3
sWS = 4
sWave = 8
sT, sT2, sT3 = 9, 10, 11
vL, vWv, vL16, t0, t1 = 1, 2, 3, 4, 5
VB = 6

DSTAMP = int(os.environ.get("DSTAMP", "0"))
def dstamp(p, idx, inv=False): pass
DMAP = {(0,0):1, (0,1):2, (0,2):3, (0,3):4, (0,4):5, (2,1):6, (2,2):7, (2,3):8, (1,1):9, (1,2):10, (1,3):11, (1,4):12, (3,1):13, (3,3):14, (3,7):15}
def stamp(p, i):
    if STAMP:
        p(f"s_memrealtime s[{64+2*i}:{65+2*i}]")
        p(f"s_memtime s[{80+2*i}:{81+2*i}]")
        p("s_waitcnt lgkmcnt(0)")
def stamp_out(p, kid, n=5):
    if STAMP:
        p("s_waitcnt vmcnt(0)")
        stamp(p, n-1)
        if DSTAMP:
            p(f"""
            s_lshl_b32 s60, s{sID}, 2
            s_add_u32 s60, s60, s{sWave}
            s_cmp_lg_u32 s60, {DSTAMP*4+1}
            s_cbranch_scc1 dso{kid}
            v_mov_b32 v{t0}, 0
            s_mov_b64 exec, 1
            """)
            for i in range(n):
                if (kid, i) in DMAP:
                    p(f"v_mov_b32 v{t1}, s{64+2*i}")
                    p(f"buffer_store_dword v{t1}, v{t0}, s[{sDbg}:{sDbg+3}], 0 offen offset:{4*DMAP[(kid,i)]}")
            p("s_mov_b64 exec, -1")
            p(f"dso{kid}:")
            return
        p(f"""
        s_lshl_b32 s60, s{sID}, 3
        s_add_u32 s60, s60, s{sWave}
        s_lshl_b32 s60, s60, 6
        s_add_u32 s60, s60, {WS_ST + kid*131072}
        v_mov_b32 v{t0}, 0
        s_mov_b64 exec, 1
        """)
        for i in range(n):
            p(f"v_mov_b32 v{t1}, s{64+2*i}")
            p(f"buffer_store_dword v{t1}, v{t0}, s[{sWS}:{sWS+3}], s60 offen offset:{4*i}")
            p(f"v_mov_b32 v{t1}, s{80+2*i}")
            p(f"buffer_store_dword v{t1}, v{t0}, s[{sWS}:{sWS+3}], s60 offen offset:{32+4*i}")
        p("s_mov_b64 exec, -1")

def common(p):
    p(f"""
    s_load_dwordx2 s[{sWS}:{sWS+1}], s[0:1], 80
    v_and_b32 v{vL}, 63, v0
    v_lshrrev_b32 v{vWv}, 6, v0
    s_mov_b32 s{sWS+2}, {WS_USED:#x}
    v_readfirstlane_b32 s{sWave}, v{vWv}
    s_mov_b32 s{sWS+3}, 0x20000
    v_lshlrev_b32 v{vL16}, 4, v{vL}
    """)
    if C.fused: ldsrd(p, sDbg, 72, 256)
def ldsrd(p, d, off, nbytes):
    p(f"""
    s_load_dwordx2 s[{d}:{d+1}], s[0:1], {off}
    s_mov_b32 s{d+2}, {nbytes:#x}
    s_mov_b32 s{d+3}, 0x20000
    """)
def tr_lane_addr(p, vd, hstride, rowbytes, nhbytes):
    p(f"""
    v_lshrrev_b32 v{t0}, 5, v{vL}
    v_mul_u32_u24 v{vd}, {hstride}, v{t0}
    v_bfe_u32 v{t0}, v{vL}, 2, 2
    v_mul_u32_u24 v{t0}, {rowbytes}, v{t0}
    v_bfe_u32 v{t1}, v{vL}, 4, 1
    v_mul_u32_u24 v{t1}, {nhbytes}, v{t1}
    v_add3_u32 v{vd}, v{vd}, v{t0}, v{t1}
    v_and_b32 v{t0}, 1, v{vL}
    v_and_b32 v{t1}, 2, v{vL}
    v_lshl_add_u32 v{vd}, v{t0}, 4, v{vd}
    v_lshl_add_u32 v{vd}, v{t1}, 2, v{vd}
    """)
def xfrag_addr(p, vd):
    p(f"""
    v_and_b32 v{t0}, 31, v{vL}
    v_lshlrev_b32 v{vd}, 7, v{t0}
    v_bfe_u32 v{t0}, v{vL}, 1, 3
    v_lshrrev_b32 v{t1}, 5, v{vL}
    v_xor_b32 v{t0}, v{t0}, v{t1}
    v_lshl_add_u32 v{vd}, v{t0}, 4, v{vd}
    """)

def lines(fn, *a):
    q = Prog(); fn(q, *a); return [l.strip() for l in q.lines]
def chunks(ls):
    out, cur = [], []
    for l in ls:
        cur.append(l)
        if l.startswith("buffer_"):
            out.append(cur); cur = []
    if cur: out[-1] = out[-1] + cur
    return out
def weave(p, mf, *streams):
    n = len(mf)
    after = [[] for _ in range(n)]
    for first, last, items in streams:
        k = len(items); span = last - first + 1
        for i, it in enumerate(items):
            after[first + (i*span)//k] += [it] if isinstance(it, str) else list(it)
    for i in range(n):
        p(mf[i])
        for l in after[i]: p(l)

class Cfg:
    sc = ""
    fused = False
    tail = False
    prio = 0
C = Cfg()
sDbg = 44
sTag = 48
sCnt = 49
vTag = 255
FQ, FO, FH = WS_FL, WS_FL + 1024, WS_FL + 2048
SPIN_MAX = 1 << 17

def tag_prefetch(p):
    if C.fused:
        p(f"v_mov_b32 v{vTag}, 0")
        p(f"buffer_load_dword v{vTag}, v{vTag}, s[{sDbg}:{sDbg+3}], 0 offen sc1")
def tag_get(p, L):
    p(f"""
    s_mov_b32 s{sCnt}, 0
    {L}_tg:
    v_readfirstlane_b32 s{sTag}, v{vTag}
    s_add_u32 s{sCnt}, s{sCnt}, 1
    s_cmp_lg_u32 s{sTag}, 0
    s_cbranch_scc1 {L}_tgd
    s_cmp_gt_u32 s{sCnt}, {SPIN_MAX}
    s_cbranch_scc1 {L}_tgd
    s_sleep 4
    v_mov_b32 v{vTag}, 0
    buffer_load_dword v{vTag}, v{vTag}, s[{sDbg}:{sDbg+3}], 0 offen sc1
    s_waitcnt vmcnt(0)
    s_branch {L}_tg
    {L}_tgd:
    """)
def signal(p, L, sOff, need_tag):
    p(f"""
    s_waitcnt vmcnt(0)
    s_barrier
    s_cmp_lg_u32 s{sWave}, 0
    s_cbranch_scc1 {L}_sg
    """)
    if need_tag: tag_get(p, L)
    p(f"""
    v_mov_b32 v{t0}, 0
    v_mov_b32 v{t1}, s{sTag}
    s_mov_b64 exec, 1
    buffer_store_dword v{t1}, v{t0}, s[{sWS}:{sWS+3}], s{sOff} offen sc1
    s_mov_b64 exec, -1
    {L}_sg:
    """)
def wait_flags(p, L, sOff, n):
    p(f"""
    s_cmp_lg_u32 s{sWave}, 0
    s_cbranch_scc1 {L}_wd
    v_min_u32 v{t0}, {n-1}, v{vL}
    v_lshlrev_b32 v{t0}, 2, v{t0}
    s_mov_b32 s{sCnt}, 0
    {L}_wl:
    buffer_load_dword v{t1}, v{t0}, s[{sWS}:{sWS+3}], s{sOff} offen sc1
    s_add_u32 s{sCnt}, s{sCnt}, 1
    s_waitcnt vmcnt(0)
    v_cmp_ne_u32 vcc, s{sTag}, v{t1}
    s_cmp_gt_u32 s{sCnt}, {SPIN_MAX}
    s_cbranch_scc1 {L}_wd
    s_cbranch_vccz {L}_wd
    s_sleep 1
    s_branch {L}_wl
    {L}_wd:
    s_barrier
    """)
def tag_publish(p, L):
    F = 8
    p(f"""
    s_mov_b32 s{sT}, {WS_FL}
    s_waitcnt lgkmcnt(0)
    buffer_load_dwordx4 {vr(F,4)}, v{vL16}, s[{sWS}:{sWS+3}], s{sT} offen sc1
    buffer_load_dwordx4 {vr(F+4,4)}, v{vL16}, s[{sWS}:{sWS+3}], s{sT} offen offset:1024 sc1
    buffer_load_dwordx4 {vr(F+8,4)}, v{vL16}, s[{sWS}:{sWS+3}], s{sT} offen offset:2048 sc1
    s_waitcnt vmcnt(0)
    v_readfirstlane_b32 s{sTag}, v{F}
    {L}_tp:
    s_add_u32 s{sTag}, s{sTag}, 1
    s_cmp_eq_u32 s{sTag}, 0
    s_cbranch_scc1 {L}_tp
    s_mov_b64 s[50:51], 0
    """)
    for i in range(12):
        p(f"v_cmp_eq_u32 vcc, s{sTag}, v{F+i}")
        p(f"s_or_b64 s[50:51], s[50:51], vcc")
    p(f"""
    s_cmp_lg_u64 s[50:51], 0
    s_cbranch_scc1 {L}_tp
    v_mov_b32 v{t0}, 0
    v_mov_b32 v{vTag}, s{sTag}
    s_mov_b64 exec, 1
    buffer_store_dword v{vTag}, v{t0}, s[{sDbg}:{sDbg+3}], 0 offen sc1
    s_mov_b64 exec, -1
    """)

def qkv(p, L):
    sX, sW = 12, 16
    sMt, sHg, sXb, sWb, sU, sXo, sWo, sI, sMx, sMw = 20, 21, 22, 23, 24, 25, 26, 27, 28, 29
    V = Alloc(VB, 253)
    vX = V("vX"); vW = V("vW"); vAx = V("vAx", 4); vAw = V("vAw")
    XF = [V("xf0", 4, 4), V("xf1", 4, 4)]
    WF = [V("wf0", 12, 4), V("wf1", 12, 4)]
    ACC = V("acc", 48, 4)
    XR = 49152
    stamp(p, 0)
    ldsrd(p, sX, 0, 0x200000)
    ldsrd(p, sW, 8, 0x180000)
    p(f"""
    s_and_b32 s{sT}, s{sID}, 3
    s_lshl_b32 s{sMt}, s{sT}, 3
    s_bfe_u32 s{sT}, s{sID}, 0x30003
    s_add_u32 s{sMt}, s{sMt}, s{sT}
    s_and_b32 s{sHg}, s{sID}, 4
    s_lshr_b32 s{sT2}, s{sID}, 6
    s_add_u32 s{sHg}, s{sHg}, s{sT2}
    s_lshl_b32 s{sT2}, s{sT2}, 1
    s_add_u32 s{sU}, s{sT}, s{sT2}
    s_lshl_b32 s{sU}, s{sU}, 1
    s_lshl_b32 s{sXb}, s{sMt}, 16
    s_lshl_b32 s{sWb}, s{sHg}, 7
    v_lshrrev_b32 v{t0}, 3, v0
    v_lshlrev_b32 v{vX}, 10, v{t0}
    v_mul_u32_u24 v{vW}, 3072, v{t0}
    v_lshrrev_b32 v{t0}, 4, v0
    v_xor_b32 v{t1}, v{t0}, v{vL}
    v_and_b32 v{t1}, 7, v{t1}
    v_lshl_add_u32 v{vX}, v{t1}, 4, v{vX}
    v_lshlrev_b32 v{t0}, 2, v{t0}
    v_xor_b32 v{t1}, v{t0}, v{vL}
    v_and_b32 v{t1}, 7, v{t1}
    v_lshl_add_u32 v{vW}, v{t1}, 4, v{vW}
    s_lshl_b32 s{sMx}, s{sWave}, 10
    s_add_u32 s{sMx}, s{sMx}, {XR}
    s_mul_i32 s{sMw}, s{sWave}, 3072
    s_mov_b32 s{sI}, 0
    s_bfe_u32 s{sT}, s{sU}, 0x30001
    s_lshl_b32 s{sT}, s{sT}, 7
    s_add_u32 s{sXo}, s{sXb}, s{sT}
    s_mov_b32 m0, s{sMx}
    s_waitcnt lgkmcnt(0)
    """)
    stamp(p, 1)
    p(f"buffer_load_dwordx4 v{vX}, s[{sX}:{sX+3}], s{sXo} offen lds")
    def group(p, par, wslot):
        p(f"""
        s_and_b32 s{sT}, s{sU}, 15
        s_mul_i32 s{sWo}, s{sT}, {32*3072}
        s_add_u32 m0, s{sMw}, {wslot*12288}
        s_add_u32 s{sWo}, s{sWo}, s{sWb}
        buffer_load_dwordx4 v{vW}, s[{sW}:{sW+3}], s{sWo} offen lds
        buffer_load_dwordx4 v{vW}, s[{sW}:{sW+3}], s{sWo} offen offset:1024 lds
        buffer_load_dwordx4 v{vW}, s[{sW}:{sW+3}], s{sWo} offen offset:2048 lds
        s_add_u32 s{sU}, s{sU}, 1
        s_add_u32 s{sI}, s{sI}, 1
        s_bfe_u32 s{sT}, s{sU}, 0x30001
        s_lshl_b32 s{sT}, s{sT}, 7
        s_add_u32 s{sXo}, s{sXb}, s{sT}
        """)
        p(f"""
        s_and_b32 s{sT}, s{sI}, 7
        s_lshl_b32 s{sT}, s{sT}, 12
        s_add_u32 m0, s{sMx}, s{sT}
        """)
        if par == 0:
            p(f"s_add_u32 s{sXo}, s{sXo}, 32768")
        else:
            p(f"""
            s_cmp_eq_u32 s{sI}, 16
            s_cselect_b32 s{sXb}, {OOB}, s{sXb}
            s_cselect_b32 s{sXo}, {OOB}, s{sXo}
            s_cselect_b32 s{sWb}, {OOB}, s{sWb}
            """)
        p(f"buffer_load_dwordx4 v{vX}, s[{sX}:{sX+3}], s{sXo} offen lds")
    group(p, 0, 0); group(p, 1, 1); group(p, 0, 2)
    xfrag_addr(p, vAx)
    p(f"""
    v_lshrrev_b32 v{t0}, 1, v{vWv}
    v_lshl_add_u32 v{vAx}, v{t0}, 12, v{vAx}
    v_add_u32 v{vAx}, {XR}, v{vAx}
    v_xor_b32 v{vAx+1}, 32, v{vAx}
    v_xor_b32 v{vAx+2}, 64, v{vAx}
    v_xor_b32 v{vAx+3}, 96, v{vAx}
    """)
    tr_lane_addr(p, vAw, 3072, 128, 32)
    p(f"""
    v_lshrrev_b32 v{t0}, 3, v{vL}
    v_xor_b32 v{t0}, v{t0}, v{vWv}
    v_and_b32 v{t0}, 1, v{t0}
    v_lshl_add_u32 v{vAw}, v{t0}, 6, v{vAw}
    """)
    for i in range(48): p(f"v_mov_b32 v{ACC+i}, 0")
    for i in range(4): p(f"v_mov_b32 v{XF[1]+i}, 0")
    for i in range(12): p(f"v_mov_b32 v{WF[1]+i}, 0")
    def reads(p, u, ks, b):
        p(f"ds_read_b128 {vr(XF[b],4)}, v{vAx + 2*(u%2) + ks} offset:{(u//2)*8192}")
        for t in range(3):
            for ab in range(2):
                p(f"ds_read_b64_tr_b16 {vr(WF[b]+4*t+2*ab,2)}, v{vAw} offset:{u*12288 + ks*6144 + t*1024 + ab*512}")
    def mfmas(p, b):
        p(f"{MFMA} {vr(ACC,16)}, {vr(WF[b],4)}, {vr(XF[b],4)}, {vr(ACC,16)}")
        p(f"{MFMA} {vr(ACC+16,16)}, {vr(WF[b]+4,4)}, {vr(XF[b],4)}, {vr(ACC+16,16)}")
        p(f"{MFMA} {vr(ACC+32,16)}, {vr(XF[b],4)}, {vr(WF[b]+8,4)}, {vr(ACC+32,16)}")
    if STAMP:
        p("s_waitcnt vmcnt(8)")
        stamp(p, 2)
    p(f"{L}_loop:")
    for u in range(4):
        p("s_waitcnt vmcnt(8) lgkmcnt(0)")
        p("s_barrier")
        g = chunks(lines(group, (u+3) % 2, (u+3) % 4))
        r0 = lines(reads, u, 0, 0); r1 = lines(reads, u, 1, 1)
        for l in r0[:3]: p(l)
        weave(p, lines(mfmas, 1), (0, 1, r0[3:]), (0, 2, g[:2] + [["s_waitcnt lgkmcnt(0)"]]))
        weave(p, lines(mfmas, 0), (0, 2, r1), (0, 1, g[2:]))
    for i in range(4): p(f"v_xor_b32 v{vAx+i}, {49152 ^ 65536}, v{vAx+i}")
    p(f"""
    s_cmp_lt_u32 s{sI}, 19
    s_cbranch_scc1 {L}_loop
    s_waitcnt lgkmcnt(0)
    """)
    mfmas(p, 1)
    stamp(p, 3)
    tag_prefetch(p)
    sQ, sKV = 20, 22
    vKo, vVo = vX, vW
    p(f"""
    s_lshl_b32 s26, s{sHg}, 5
    s_add_u32 s26, s26, s{sMt}
    s_lshl_b32 s26, s26, 2
    s_add_u32 s26, s26, {FQ}
    s_lshl_b32 s{sT}, s{sMt}, 1
    s_lshr_b32 s{sT2}, s{sWave}, 1
    s_add_u32 s{sT}, s{sT}, s{sT2}
    s_lshl_b32 s{sT2}, s{sHg}, 8
    s_add_u32 s{sT}, s{sT}, s{sT2}
    s_and_b32 s{sT2}, s{sWave}, 1
    s_lshl_b32 s{sT2}, s{sT2}, 7
    s_add_u32 s{sT}, s{sT}, s{sT2}
    s_lshl_b32 s{sQ}, s{sT}, 10
    s_lshl_b32 s{sKV}, s{sT}, 11
    s_add_u32 s{sKV}, s{sKV}, {WS_KV}
    s_mov_b32 s24, {f32(0.25*LOG2E)}
    s_mov_b32 s25, {f32(0.25*LOG2E)}
    v_and_b32 v{t0}, 0x33, v{vL}
    v_and_b32 v{t1}, 4, v{vL}
    v_lshl_or_b32 v{t0}, v{t1}, 1, v{t0}
    v_and_b32 v{t1}, 8, v{vL}
    v_lshrrev_b32 v{t1}, 1, v{t1}
    v_or_b32 v{t0}, v{t0}, v{t1}
    v_lshlrev_b32 v{vKo}, 4, v{t0}
    v_and_b32 v{t1}, 15, v{vL}
    v_lshlrev_b32 v{vVo}, 4, v{t1}
    v_bfe_u32 v{t0}, v{vL}, 4, 1
    v_lshl_add_u32 v{vVo}, v{t0}, 17, v{vVo}
    v_lshrrev_b32 v{t0}, 5, v{vL}
    v_lshl_add_u32 v{vVo}, v{t0}, 8, v{vVo}
    s_add_u32 s{sT}, s{sQ}, 65536
    s_add_u32 s{sT2}, s{sKV}, 131072
    """)
    for t in (1, 2, 0):
        if t == 0:
            for i in range(8): p(f"v_pk_mul_f32 {vr(ACC+2*i,2)}, {vr(ACC+2*i,2)}, s[24:25]")
        for i in range(8):
            p(f"v_cvt_pk_bf16_f32 v{ACC+16*t+i}, v{ACC+16*t+2*i}, v{ACC+16*t+2*i+1}")
        if t == 0:
            p(f"buffer_store_dwordx4 {vr(ACC,4)}, v{vL16}, s[{sWS}:{sWS+3}], s{sQ} offen{C.sc}")
            p(f"buffer_store_dwordx4 {vr(ACC+4,4)}, v{vL16}, s[{sWS}:{sWS+3}], s{sT} offen{C.sc}")
        elif t == 1:
            p(f"buffer_store_dwordx4 {vr(ACC+16,4)}, v{vKo}, s[{sWS}:{sWS+3}], s{sKV} offen{C.sc}")
            p(f"buffer_store_dwordx4 {vr(ACC+20,4)}, v{vKo}, s[{sWS}:{sWS+3}], s{sT2} offen{C.sc}")
        else:
            p(f"buffer_store_dwordx4 {vr(ACC+32,4)}, v{vVo}, s[{sWS}:{sWS+3}], s{sKV} offen offset:1024{C.sc}")
            p(f"buffer_store_dwordx4 {vr(ACC+36,4)}, v{vVo}, s[{sWS}:{sWS+3}], s{sKV} offen offset:1536{C.sc}")
    if C.fused: signal(p, L, 26, True)
    stamp_out(p, 0)
    return V.next

def gate(p, L):
    sX, sG = 12, 40
    sI, sXo, sGo = 37, 38, 39
    V = Alloc(VB, 253)
    vA = V("a"); GW = V("gw", 4, 4); GX = V("gx", 8, 4)
    ldsrd(p, sG, 56, 1024)
    p(f"""
    s_lshl_b32 s{sXo}, s{sT3}, 2
    s_add_u32 s{sXo}, s{sXo}, s{sWave}
    s_lshl_b32 s{sGo}, s{sXo}, 4
    s_add_u32 s{sGo}, s{sGo}, {WS_G}
    s_lshl_b32 s{sXo}, s{sXo}, 12
    v_lshrrev_b32 v{vA}, 5, v{vL}
    v_lshlrev_b32 v{vA}, 2, v{vA}
    s_waitcnt lgkmcnt(0)
    buffer_load_dwordx4 {vr(GW,4)}, v{vL16}, s[{sG}:{sG+3}], 0 offen
    s_mov_b32 s{sI}, 0
    {L}_loop:
    buffer_load_dwordx4 {vr(GX,4)}, v{vL16}, s[{sX}:{sX+3}], s{sXo} offen
    buffer_load_dwordx4 {vr(GX+4,4)}, v{vL16}, s[{sX}:{sX+3}], s{sXo} offen offset:1024
    s_add_u32 s{sXo}, s{sXo}, 2048
    s_waitcnt vmcnt(0)
    v_dot2_f32_bf16 v{t0}, v{GX}, v{GW}, 0
    v_dot2_f32_bf16 v{t1}, v{GX+4}, v{GW}, 0
    """)
    for i in range(1, 4):
        p(f"v_dot2_f32_bf16 v{t0}, v{GX+i}, v{GW+i}, v{t0}")
        p(f"v_dot2_f32_bf16 v{t1}, v{GX+4+i}, v{GW+i}, v{t1}")
    p(f"""
    s_nop 3
    v_permlane32_swap_b32 v{t0}, v{t1}
    s_nop 1
    v_add_f32 v{t0}, v{t0}, v{t1}
    s_nop 1
    v_add_f32_dpp v{t0}, v{t0}, v{t0} row_ror:8 row_mask:0xf bank_mask:0xf
    s_nop 1
    v_add_f32_dpp v{t0}, v{t0}, v{t0} row_ror:4 row_mask:0xf bank_mask:0xf
    s_nop 1
    v_add_f32_dpp v{t0}, v{t0}, v{t0} row_ror:2 row_mask:0xf bank_mask:0xf
    s_nop 1
    v_add_f32_dpp v{t0}, v{t0}, v{t0} row_ror:1 row_mask:0xf bank_mask:0xf
    v_mov_b32 v{t1}, v{t0}
    s_nop 1
    v_permlane16_swap_b32 v{t0}, v{t1}
    s_nop 1
    v_add_f32 v{t0}, v{t0}, v{t1}
    v_cvt_pk_bf16_f32 v{t0}, v{t0}, v{t0}
    v_lshlrev_b32 v{t0}, 16, v{t0}
    v_mul_f32 v{t0}, {f32(-LOG2E)}, v{t0}
    v_exp_f32 v{t0}, v{t0}
    s_nop 0
    v_add_f32 v{t0}, 1.0, v{t0}
    v_rcp_f32 v{t0}, v{t0}
    s_nop 0
    v_cvt_pk_bf16_f32 v{t0}, v{t0}, v{t0}
    v_lshlrev_b32 v{t0}, 16, v{t0}
    buffer_store_dword v{t0}, v{vA}, s[{sWS}:{sWS+3}], s{sGo} offen{C.sc}
    s_add_u32 s{sGo}, s{sGo}, 8
    s_add_u32 s{sI}, s{sI}, 1
    s_cmp_lt_u32 s{sI}, 2
    s_cbranch_scc1 {L}_loop
    """)
    return V.next

def up(p, L):
    sX, sWg, sWu = 12, 16, 20
    sMt, sFt, sXb, sWb, sU, sXo, sWo, sI, sMx, sMw, sWs, sRd, sH = 24, 25, 26, 27, 28, 29, 30, 31, 32, 33, 34, 35, 36
    V = Alloc(VB, 253)
    vX = V("vX", 2); vW = V("vW", 4); vAx = V("vAx", 4); vAw0 = V("vAw0"); vAw = V("vAw", 4)
    XF = V("xf", 32, 4)
    WF = [V("wf0", 16, 4), V("wf1", 16, 4)]
    ACC = V("acc", 128, 4)
    XR = 49152
    p(f"""
    s_lshr_b32 s{sT2}, s{sID}, 3
    s_cmp_lt_u32 s{sT2}, 28
    s_cbranch_scc1 {L}_main
    """)
    if C.fused:
        p(f"""
        s_cmp_lg_u32 s{sWave}, 0
        s_cbranch_scc1 {L}_done
        s_waitcnt lgkmcnt(0)
        v_mov_b32 v{vTag}, 0
        s_cmp_lg_u32 s{sID}, 224
        s_cbranch_scc1 {L}_np
        """)
        tag_publish(p, L)
        p(f"{L}_np:")
        p("s_nop 0")
        tag_get(p, L + "_i")
    p(f"""
    s_branch {L}_done
    {L}_main:
    """)
    stamp(p, 0)
    ldsrd(p, sX, 0, 0x200000)
    ldsrd(p, sWg, 32, 512*3584)
    ldsrd(p, sWu, 40, 512*3584)
    p(f"""
    s_and_b32 s{sT}, s{sID}, 3
    s_lshl_b32 s{sMt}, s{sT}, 2
    s_and_b32 s{sT}, s{sT2}, 3
    s_add_u32 s{sMt}, s{sMt}, s{sT}
    s_bfe_u32 s{sFt}, s{sID}, 0x10002
    s_mul_i32 s{sFt}, s{sFt}, 7
    s_lshr_b32 s{sT2}, s{sT2}, 2
    s_add_u32 s{sFt}, s{sFt}, s{sT2}
    s_lshl_b32 s{sT}, s{sT}, 1
    s_add_u32 s{sU}, s{sT}, s{sT2}
    s_lshl_b32 s{sU}, s{sU}, 1
    s_lshl_b32 s{sXb}, s{sMt}, 17
    s_lshl_b32 s{sWb}, s{sFt}, 8
    s_cmp_ge_u32 s{sFt}, 8
    s_cbranch_scc1 {L}_ng
    s_lshl_b32 s{sT3}, s{sMt}, 3
    s_add_u32 s{sT3}, s{sT3}, s{sFt}
    """)
    ng = gate(p, L + "_g")
    p(f"""
    s_waitcnt vmcnt(0)
    {L}_ng:
    v_lshrrev_b32 v{t0}, 3, v{vL}
    v_lshl_add_u32 v{t0}, v{vWv}, 4, v{t0}
    v_lshlrev_b32 v{vX}, 10, v{t0}
    v_lshrrev_b32 v{t0}, 4, v{vL}
    v_xor_b32 v{t1}, v{t0}, v{vL}
    v_and_b32 v{t1}, 7, v{t1}
    v_lshl_add_u32 v{vX}, v{t1}, 4, v{vX}
    v_xor_b32 v{vX+1}, 64, v{vX}
    v_add_u32 v{vX+1}, 7168, v{vX+1}
    ; W dma: row = 8w + 4jj + lane/16 ; chunk = (lane%16) ^ ((2*(lane/16)+region)<<1)
    v_lshl_add_u32 v{t1}, v{vWv}, 3, v{t0}
    v_mul_u32_u24 v{vW}, 3584, v{t1}
    v_lshlrev_b32 v{t0}, 2, v{t0}
    v_xor_b32 v{t1}, v{t0}, v{vL}
    v_and_b32 v{t1}, 15, v{t1}
    v_lshl_add_u32 v{vW}, v{t1}, 4, v{vW}
    v_add_u32 v{vW+1}, {4*3584-1024}, v{vW}
    v_xor_b32 v{vW+2}, 32, v{vW}
    v_xor_b32 v{vW+3}, 32, v{vW+1}
    s_lshl_b32 s{sMw}, s{sWave}, 11
    s_add_u32 s{sMx}, s{sMw}, {XR}
    s_mov_b32 s{sWs}, s{sMw}
    s_mov_b32 s{sI}, 0
    s_bfe_u32 s{sT}, s{sU}, 0x30001
    s_lshl_b32 s{sT}, s{sT}, 7
    s_add_u32 s{sXo}, s{sXb}, s{sT}
    s_mov_b32 m0, s{sMx}
    s_waitcnt lgkmcnt(0)
    """)
    stamp(p, 1)
    p(f"buffer_load_dwordx4 v{vX}, s[{sX}:{sX+3}], s{sXo} offen lds")
    p(f"buffer_load_dwordx4 v{vX+1}, s[{sX}:{sX+3}], s{sXo} offen offset:1024 lds")
    def group(p, par):
        p(f"""
        s_and_b32 s{sT}, s{sU}, 15
        s_mul_i32 s{sWo}, s{sT}, {32*3584}
        s_mov_b32 m0, s{sWs}
        s_add_u32 s{sWo}, s{sWo}, s{sWb}
        buffer_load_dwordx4 v{vW}, s[{sWg}:{sWg+3}], s{sWo} offen lds
        buffer_load_dwordx4 v{vW+1}, s[{sWg}:{sWg+3}], s{sWo} offen offset:1024 lds
        s_add_u32 m0, s{sWs}, 8192
        s_add_u32 s{sU}, s{sU}, 1
        buffer_load_dwordx4 v{vW+2}, s[{sWu}:{sWu+3}], s{sWo} offen lds
        buffer_load_dwordx4 v{vW+3}, s[{sWu}:{sWu+3}], s{sWo} offen offset:1024 lds
        s_add_u32 s{sI}, s{sI}, 1
        s_add_u32 s{sWs}, s{sWs}, 16384
        s_cmp_ge_u32 s{sWs}, {XR}
        s_cselect_b32 s{sWs}, s{sMw}, s{sWs}
        s_bfe_u32 s{sT}, s{sU}, 0x30001
        s_lshl_b32 s{sT}, s{sT}, 7
        s_add_u32 s{sXo}, s{sXb}, s{sT}
        s_and_b32 s{sT}, s{sI}, 3
        s_lshl_b32 s{sT}, s{sT}, 13
        s_add_u32 m0, s{sMx}, s{sT}
        """)
        if par == 0:
            p(f"s_add_u32 s{sXo}, s{sXo}, 65536")
        else:
            p(f"""
            s_cmp_eq_u32 s{sI}, 16
            s_cselect_b32 s{sXb}, {OOB}, s{sXb}
            s_cselect_b32 s{sXo}, {OOB}, s{sXo}
            s_cselect_b32 s{sWb}, {OOB}, s{sWb}
            """)
        p(f"buffer_load_dwordx4 v{vX}, s[{sX}:{sX+3}], s{sXo} offen lds")
        p(f"buffer_load_dwordx4 v{vX+1}, s[{sX}:{sX+3}], s{sXo} offen offset:1024 lds")
    group(p, 0); group(p, 1)
    xfrag_addr(p, vAx)
    p(f"""
    v_lshrrev_b32 v{t0}, 1, v{vWv}
    v_lshl_add_u32 v{vAx}, v{t0}, 13, v{vAx}
    v_add_u32 v{vAx}, {XR}, v{vAx}
    v_xor_b32 v{vAx+1}, 32, v{vAx}
    v_xor_b32 v{vAx+2}, 64, v{vAx}
    v_xor_b32 v{vAx+3}, 96, v{vAx}
    """)
    tr_lane_addr(p, vAw0, 2048, 256, 8192)
    p(f"""
    v_bfe_u32 v{t0}, v{vL}, 2, 2
    v_bfe_u32 v{t1}, v{vL}, 4, 1
    v_lshl_or_b32 v{t0}, v{t0}, 1, v{t1}
    v_and_b32 v{t1}, 1, v{vWv}
    v_lshlrev_b32 v{t1}, 2, v{t1}
    v_xor_b32 v{t0}, v{t0}, v{t1}
    v_lshl_add_u32 v{vAw0}, v{t0}, 5, v{vAw0}
    s_mov_b32 s{sRd}, 0
    s_lshl_b32 s{sT}, s{sMt}, 2
    s_and_b32 s{sT2}, s{sWave}, 2
    s_add_u32 s{sT}, s{sT}, s{sT2}
    s_mul_i32 s{sH}, s{sT}, 112
    s_lshl_b32 s{sT}, s{sFt}, 3
    s_add_u32 s{sH}, s{sH}, s{sT}
    s_and_b32 s{sT}, s{sWave}, 1
    s_lshl_b32 s{sT}, s{sT}, 2
    s_add_u32 s{sH}, s{sH}, s{sT}
    s_lshl_b32 s{sH}, s{sH}, 10
    s_add_u32 s{sH}, s{sH}, {WS_H}
    """)
    for i in range(128): p(f"v_mov_b32 v{ACC+i}, 0")
    for i in range(16): p(f"v_mov_b32 v{WF[1]+i}, 0")
    for i in range(8): p(f"v_mov_b32 v{XF+24+i}, 0")
    def xreads(p, ks):
        for mi in range(2):
            p(f"ds_read_b128 {vr(XF+8*ks+4*mi,4)}, v{vAx+ks} offset:{mi*4096}")
    def wreads(p, ks, b):
        for tt in range(4):
            for ab in range(2):
                p(f"ds_read_b64_tr_b16 {vr(WF[b]+4*tt+2*ab,2)}, v{vAw+tt} offset:{ks*4096 + ab*1024}")
    def mfmas(p, b, ks4):
        for tt in range(4):
            for mi in range(2):
                A = ACC + 64*mi + 16*tt
                p(f"{MFMA} {vr(A,16)}, {vr(WF[b]+4*tt,4)}, {vr(XF+8*ks4+4*mi,4)}, {vr(A,16)}")
    if STAMP:
        p("s_waitcnt vmcnt(6)")
        stamp(p, 2)
    if C.prio: p("s_setprio 0")
    p(f"{L}_loop:")
    for par in range(2):
        p(f"v_add_u32 v{vAw}, s{sRd}, v{vAw0}")
        for tt in range(1, 4): p(f"v_xor_b32 v{vAw+tt}, {32*tt}, v{vAw}")
        p(f"""
        s_add_u32 s{sRd}, s{sRd}, 16384
        s_cmp_eq_u32 s{sRd}, {XR}
        s_cselect_b32 s{sRd}, 0, s{sRd}
        s_waitcnt vmcnt(6) lgkmcnt(0)
        s_barrier
        """)
        g = chunks(lines(group, par))
        r0 = (lines(xreads, 0) if par == 0 else []) + lines(wreads, 0, 0)
        r1 = lines(wreads, 1, 1) + (lines(xreads, 1) + lines(xreads, 2) + lines(xreads, 3) if par == 0 else [])
        weave(p, lines(mfmas, 1, 3 if par == 0 else 1), (0, 4, r0), (1, 6, g[:3]), (7, 7, ["s_waitcnt lgkmcnt(0)"]))
        weave(p, lines(mfmas, 0, 2*par), (0, 6, r1), (1, 6, g[3:]))
    for i in range(4): p(f"v_xor_b32 v{vAx+i}, {49152 ^ 65536}, v{vAx+i}")
    p(f"""
    s_cmp_lt_u32 s{sI}, 18
    s_cbranch_scc1 {L}_loop
    s_waitcnt lgkmcnt(0)
    """)
    mfmas(p, 1, 3)
    if C.prio: p("s_setprio 2")
    stamp(p, 3)
    tag_prefetch(p)
    c0 = -2.0*math.sqrt(2.0/math.pi)*LOG2E
    c1 = c0*0.044715
    p(f"""
    s_mov_b32 s40, {f32(c1)}
    s_mov_b32 s41, {f32(c1)}
    v_mov_b32 v{WF[0]}, {f32(c0)}
    v_mov_b32 v{WF[0]+1}, {f32(c0)}
    s_add_u32 s{sT}, s{sH}, {112*1024}
    s_nop 7
    """)
    T = WF[1]
    for tt in range(4):
      for mi in range(2):
        A = ACC + 64*mi + 16*tt
        for i in range(4): p(f"v_pk_mul_f32 {vr(T+2*i,2)}, {vr(A+2*i,2)}, {vr(A+2*i,2)}")
        for i in range(4): p(f"v_pk_fma_f32 {vr(T+2*i,2)}, {vr(T+2*i,2)}, s[40:41], {vr(WF[0],2)}")
        for i in range(4): p(f"v_pk_mul_f32 {vr(T+2*i,2)}, {vr(T+2*i,2)}, {vr(A+2*i,2)}")
        for i in range(8): p(f"v_exp_f32 v{T+i}, v{T+i}")
        for i in range(4): p(f"v_pk_mul_f32 {vr(A+2*i,2)}, {vr(A+2*i,2)}, {vr(A+8+2*i,2)}")
        for i in range(4): p(f"v_pk_add_f32 {vr(T+2*i,2)}, {vr(T+2*i,2)}, 1.0 op_sel_hi:[1,0]")
        for i in range(8): p(f"v_rcp_f32 v{T+i}, v{T+i}")
        p("s_nop 0")
        for i in range(4): p(f"v_pk_mul_f32 {vr(A+2*i,2)}, {vr(A+2*i,2)}, {vr(T+2*i,2)}")
        for i in range(4): p(f"v_cvt_pk_bf16_f32 v{A+8+i}, v{A+2*i}, v{A+2*i+1}")
        so = sH if mi == 0 else sT
        p(f"buffer_store_dwordx4 {vr(A+8,4)}, v{vL16}, s[{sWS}:{sWS+3}], s{so} offen offset:{tt*1024}{C.sc}")
    if C.fused:
        p(f"""
        s_lshl_b32 s{sT2}, s{sMt}, 4
        s_add_u32 s{sT2}, s{sT2}, s{sFt}
        s_lshl_b32 s{sT2}, s{sT2}, 2
        s_add_u32 s{sT2}, s{sT2}, {FH}
        """)
        signal(p, L, sT2, True)
    stamp_out(p, 1)
    p(f"{L}_done:")
    return max(V.next, ng)

def attn(p, L):
    NR = 4; CH = 16384
    sHead, sQb, sSrc, sDst, sC, sRd, sO, sFb = 12, 13, 14, 15, 16, 17, 18, 19
    sMask = 20
    V = Alloc(VB, 253)
    vDma = V("dma"); vV0 = V("vV0"); vK = V("vK"); vV = V("vV"); vIdx = V("idx")
    QA = V("QA", 4, 4); QB = V("QB", 4, 4)
    KF = [V(f"K{i}", 4, 4) for i in range(2)]
    VF = [V(f"V{i}", 8, 4) for i in range(4)]
    SA = [V(f"SA{i}", 16, 4) for i in range(2)]
    SB = [V(f"SB{i}", 16, 4) for i in range(2)]
    OA = V("OA", 16, 4); OB = V("OB", 16, 4); CA = V("CA", 16, 4); CB = V("CB", 16, 4)
    sQo, sFo, sFq = 23, 24, 25
    stamp(p, 0)
    p(f"""
    s_and_b32 s{sT}, s{sID}, 7
    s_lshl_b32 s{sFq}, s{sT}, 7
    s_add_u32 s{sFq}, s{sFq}, {FQ}
    s_lshr_b32 s{sT2}, s{sID}, 3
    s_lshl_b32 s{sHead}, s{sT}, 2
    s_and_b32 s{sT}, s{sT2}, 3
    s_add_u32 s{sHead}, s{sHead}, s{sT}
    s_lshr_b32 s{sQb}, s{sT2}, 2
    s_lshl_b32 s{sFo}, s{sQb}, 5
    s_add_u32 s{sFo}, s{sFo}, s{sHead}
    s_lshl_b32 s{sFo}, s{sFo}, 2
    s_add_u32 s{sFo}, s{sFo}, {FO}
    v_lshl_add_u32 v{vDma}, v{vWv}, 12, v{vL16}
    s_lshl_b32 s{sDst}, s{sWave}, 12
    s_lshl_b32 s{sT}, s{sQb}, 3
    s_lshl_b32 s{sT2}, s{sWave}, 1
    s_add_u32 s{sT}, s{sT}, s{sT2}
    s_lshl_b32 s{sO}, s{sT}, 15
    s_lshl_b32 s{sT2}, s{sHead}, 10
    s_add_u32 s{sO}, s{sO}, s{sT2}
    s_add_u32 s{sO}, s{sO}, {WS_O}
    s_lshl_b32 s{sT2}, s{sHead}, 6
    s_add_u32 s{sT}, s{sT}, s{sT2}
    s_lshl_b32 s{sQo}, s{sT}, 10
    s_lshl_b32 s{sHead}, s{sHead}, 17
    s_add_u32 s{sHead}, s{sHead}, {WS_KV}
    s_mov_b32 s{sSrc}, s{sHead}
    s_mov_b32 s{sC}, 0
    """)
    def setup():
        p(f"""
        s_mov_b32 s{sMask}, 0x0000ffff
        s_mov_b32 s{sMask+1}, 0x0000ffff
        v_mov_b32 v{vIdx}, 0xdddddddd
        v_mov_b32 v{vK}, v{vL16}
        v_and_b32 v{t0}, 15, v{vL}
        v_lshlrev_b32 v{t0}, 4, v{t0}
        v_lshrrev_b32 v{t1}, 5, v{vL}
        v_lshl_add_u32 v{vV0}, v{t1}, 8, v{t0}
        v_add_u32 v{vV0}, 1024, v{vV0}
        v_mov_b32 v{vV}, v{vV0}
        v_and_b32 v{t0}, 27, v{vL}
        v_cmp_eq_u32 vcc, 16, v{t0}
        v_mov_b32 v{t1}, 0x3f803f80
        s_nop 0
        v_cndmask_b32 v{t0}, 0, v{t1}, vcc
        """)
        for b in range(4):
            for i in range(8): p(f"v_mov_b32 v{VF[b]+i}, v{t0}")
        for i in range(16):
            p(f"v_mov_b32 v{OA+i}, 0")
            p(f"v_mov_b32 v{OB+i}, 0")
            p(f"v_mov_b32 v{SB[1]+i}, 0")
    if C.fused:
        setup()
        wait_flags(p, L, sFq, 32)
        dstamp(p, 3)
    else:
        p("s_waitcnt lgkmcnt(0)")
    stamp(p, 1)
    p(f"""
    buffer_load_dwordx4 {vr(QA,4)}, v{vL16}, s[{sWS}:{sWS+3}], s{sQo} offen{C.sc}
    buffer_load_dwordx4 {vr(QB,4)}, v{vL16}, s[{sWS}:{sWS+3}], s{sQo} offen offset:1024{C.sc}
    """)
    def dma():
        p(f"""
        s_mov_b32 m0, s{sDst}
        s_add_u32 s{sDst}, s{sDst}, {CH}
        buffer_load_dwordx4 v{vDma}, s[{sWS}:{sWS+3}], s{sSrc} offen{C.sc} lds
        buffer_load_dwordx4 v{vDma}, s[{sWS}:{sWS+3}], s{sSrc} offen offset:1024{C.sc} lds
        buffer_load_dwordx4 v{vDma}, s[{sWS}:{sWS+3}], s{sSrc} offen offset:2048{C.sc} lds
        buffer_load_dwordx4 v{vDma}, s[{sWS}:{sWS+3}], s{sSrc} offen offset:3072{C.sc} lds
        s_and_b32 s{sDst}, s{sDst}, {NR*CH-1}
        s_add_u32 s{sSrc}, s{sSrc}, {CH}
        """)
    p(f"{L}_pro:")
    dma()
    p(f"""
    s_add_u32 s{sC}, s{sC}, 1
    s_cmp_lt_u32 s{sC}, {NR}
    s_cbranch_scc1 {L}_pro
    """)
    if not C.fused: setup()
    def kread(j, b): p(f"ds_read_b128 {vr(KF[b],4)}, v{vK} offset:{j*2048}")
    def vread(j, b):
        p(f"s_mov_b64 exec, s[{sMask}:{sMask+1}]")
        p(f"ds_read_b128 {vr(VF[b],4)}, v{vV} offset:{j*2048}")
        p(f"ds_read_b128 {vr(VF[b]+4,4)}, v{vV} offset:{j*2048+512}")
        p(f"s_mov_b64 exec, -1")
    p(f"""
    s_waitcnt vmcnt({4*(NR-1)})
    s_barrier
    """)
    stamp(p, 2)
    kread(0, 0); kread(1, 1); vread(0, 0); vread(1, 1)
    p(f"""
    s_waitcnt lgkmcnt(5)
    {MFMA} {vr(SA[0],16)}, {vr(KF[0],4)}, {vr(QA,4)}, 0
    {MFMA} {vr(SB[0],16)}, {vr(KF[0],4)}, {vr(QB,4)}, 0
    s_nop 10
    """)
    def rowmax(S, T, first=True):
        if first:
            p(f"v_max3_f32 v{T}, v{S}, v{S+1}, v{S+2}")
            for i in range(3, 15, 2): p(f"v_max3_f32 v{T}, v{S+i}, v{S+i+1}, v{T}")
            p(f"v_max_f32 v{T}, v{S+15}, v{T}")
        else:
            for i in range(0, 16, 2): p(f"v_max3_f32 v{T}, v{S+i}, v{S+i+1}, v{T}")
    def bcast_neg(T, T2, Cc):
        p(f"""
        v_mov_b32 v{T2}, v{T}
        s_nop 1
        v_permlane32_swap_b32 v{T}, v{T2}
        s_nop 1
        v_max_f32 v{T}, v{T}, v{T2}
        """)
        for i in range(16): p(f"v_sub_f32 v{Cc+i}, 0, v{T}")
    rowmax(SA[0], t0); bcast_neg(t0, t1, CA)
    p("s_nop 1")
    p(f"{MFMA} {vr(SA[0],16)}, {vr(KF[0],4)}, {vr(QA,4)}, {vr(CA,16)}")
    rowmax(SB[0], t0); bcast_neg(t0, t1, CB)
    p(f"""
    s_mov_b32 s{sC}, 0
    s_mov_b32 s{sRd}, 0
    {MFMA} {vr(SB[0],16)}, {vr(KF[0],4)}, {vr(QB,4)}, {vr(CB,16)}
    s_branch {L}_mid
    """)
    POS = (0, 5, 10)
    def phase(S, mf, extra):
        for i in range(16):
            for k in range(3):
                if i == POS[k]:
                    p(mf[k])
                    if k in extra: extra[k]()
            p(f"v_exp_f32 v{S+i}, v{S+i}")
    def tile(j):
        tb = j % 2; vb = (j + 2) % 4; vprev = (j + 1) % 4
        mfA = [f"{SMF} {vr(OB,16)}, {vr(VF[vprev],4)}, {vr(SB[1-tb],8)}, v{vIdx}",
               f"{SMF} {vr(OB,16)}, {vr(VF[vprev]+4,4)}, {vr(SB[1-tb]+8,8)}, v{vIdx}",
               f"{MFMA} {vr(SA[1-tb],16)}, {vr(KF[1-tb],4)}, {vr(QA,4)}, {vr(CA,16)}"]
        mfB = [f"{SMF} {vr(OA,16)}, {vr(VF[vb],4)}, {vr(SA[tb],8)}, v{vIdx}",
               f"{SMF} {vr(OA,16)}, {vr(VF[vb]+4,4)}, {vr(SA[tb]+8,8)}, v{vIdx}",
               f"{MFMA} {vr(SB[1-tb],16)}, {vr(KF[1-tb],4)}, {vr(QB,4)}, {vr(CB,16)}"]
        def kr():
            p("s_waitcnt lgkmcnt(0)")
            kread(j, tb)
        phase(SA[tb], mfA, {0: kr})
        phase(SB[tb], mfB, {1: lambda: vread(j, j % 4)})
    p(f"{L}_top:")
    p(f"""
    s_add_u32 s{sRd}, s{sRd}, {CH}
    s_and_b32 s{sRd}, s{sRd}, {NR*CH-1}
    v_add_u32 v{vK}, s{sRd}, v{vL16}
    v_add_u32 v{vV}, s{sRd}, v{vV0}
    s_cmp_ge_u32 s{sC}, {8-NR+1}
    s_cbranch_scc1 {L}_nodma
    s_waitcnt vmcnt({4*(NR-2)}) lgkmcnt(0)
    s_barrier
    """)
    dma()
    p(f"""
    s_branch {L}_go
    {L}_nodma:
    s_waitcnt vmcnt(0) lgkmcnt(0)
    s_barrier
    {L}_go:
    """)
    tile(0); tile(1)
    p(f"""
    s_cmp_eq_u32 s{sC}, 8
    s_cbranch_scc1 {L}_fin
    {L}_mid:
    """)
    for j in range(2, 8): tile(j)
    p(f"""
    s_add_u32 s{sC}, s{sC}, 1
    s_branch {L}_top
    {L}_fin:
    s_nop 1
    {SMF} {vr(OB,16)}, {vr(VF[3],4)}, {vr(SB[1],8)}, v{vIdx}
    {SMF} {vr(OB,16)}, {vr(VF[3]+4,4)}, {vr(SB[1]+8,8)}, v{vIdx}
    s_mov_b32 s{sFb}, 0
    s_waitcnt lgkmcnt(0)
    s_nop 12
    """)
    stamp(p, 3)
    p(f"""
    v_add_f32 v{t1}, v{OA+8}, v{OB+8}
    """)
    for i in range(8):
        p(f"v_fmac_f32 v{t1}, 0, v{OA+i}")
        p(f"v_fmac_f32 v{t1}, 0, v{OB+i}")
    p(f"""
    v_cmp_nge_f32 vcc, {f32(2.0**30)}, v{t1}
    s_nop 1
    s_cbranch_vccz {L}_out
    """)
    sK = 22
    p(f"""
    v_mov_b32 v{CA}, 0xff800000
    v_mov_b32 v{CB}, 0xff800000
    s_mov_b32 s{sK}, s{sHead}
    s_mov_b32 s{sC}, 0
    {L}_fb1:
    buffer_load_dwordx4 {vr(KF[0],4)}, v{vL16}, s[{sWS}:{sWS+3}], s{sK} offen{C.sc}
    s_waitcnt vmcnt(0)
    {MFMA} {vr(SA[0],16)}, {vr(KF[0],4)}, {vr(QA,4)}, 0
    {MFMA} {vr(SB[0],16)}, {vr(KF[0],4)}, {vr(QB,4)}, 0
    s_nop 15
    """)
    rowmax(SA[0], CA, False)
    rowmax(SB[0], CB, False)
    p(f"""
    s_add_u32 s{sK}, s{sK}, 2048
    s_add_u32 s{sC}, s{sC}, 1
    s_cmp_lt_u32 s{sC}, 64
    s_cbranch_scc1 {L}_fb1
    v_mov_b32 v{t0}, v{CA}
    """)
    bcast_neg(t0, t1, CA)
    p(f"v_mov_b32 v{t0}, v{CB}")
    bcast_neg(t0, t1, CB)
    for i in range(16):
        p(f"v_mov_b32 v{OA+i}, 0")
        p(f"v_mov_b32 v{OB+i}, 0")
    p(f"""
    s_mov_b32 s{sK}, s{sHead}
    s_mov_b32 s{sC}, 0
    {L}_fb2:
    buffer_load_dwordx4 {vr(KF[0],4)}, v{vL16}, s[{sWS}:{sWS+3}], s{sK} offen{C.sc}
    s_mov_b64 exec, s[{sMask}:{sMask+1}]
    buffer_load_dwordx4 {vr(VF[0],4)}, v{vV0}, s[{sWS}:{sWS+3}], s{sK} offen{C.sc}
    buffer_load_dwordx4 {vr(VF[0]+4,4)}, v{vV0}, s[{sWS}:{sWS+3}], s{sK} offen offset:512{C.sc}
    s_mov_b64 exec, -1
    s_waitcnt vmcnt(0)
    {MFMA} {vr(SA[0],16)}, {vr(KF[0],4)}, {vr(QA,4)}, {vr(CA,16)}
    {MFMA} {vr(SB[0],16)}, {vr(KF[0],4)}, {vr(QB,4)}, {vr(CB,16)}
    s_nop 15
    """)
    for i in range(16): p(f"v_exp_f32 v{SA[0]+i}, v{SA[0]+i}")
    for i in range(16): p(f"v_exp_f32 v{SB[0]+i}, v{SB[0]+i}")
    p(f"""
    s_nop 2
    {SMF} {vr(OA,16)}, {vr(VF[0],4)}, {vr(SA[0],8)}, v{vIdx}
    {SMF} {vr(OA,16)}, {vr(VF[0]+4,4)}, {vr(SA[0]+8,8)}, v{vIdx}
    {SMF} {vr(OB,16)}, {vr(VF[0],4)}, {vr(SB[0],8)}, v{vIdx}
    {SMF} {vr(OB,16)}, {vr(VF[0]+4,4)}, {vr(SB[0]+8,8)}, v{vIdx}
    s_add_u32 s{sK}, s{sK}, 2048
    s_add_u32 s{sC}, s{sC}, 1
    s_cmp_lt_u32 s{sC}, 64
    s_cbranch_scc1 {L}_fb2
    s_nop 15
    {L}_out:
    """)
    def fin(O, off):
        p(f"v_rcp_f32 v{t0}, v{O+8}")
        p("s_nop 0")
        for i in range(8): p(f"v_mul_f32 v{O+i}, v{O+i}, v{t0}")
        for i in range(4): p(f"v_cvt_pk_bf16_f32 v{O+i}, v{O+2*i}, v{O+2*i+1}")
        p(f"buffer_store_dwordx4 {vr(O,4)}, v{vL16}, s[{sWS}:{sWS+3}], s{off} offen{C.sc if C.tail else ''}")
    p(f"s_add_u32 s{sT}, s{sO}, 32768")
    fin(OA, sO)
    fin(OB, sT)
    if C.tail: signal(p, L + "_o", sFo, False)
    stamp_out(p, 2)
    return V.next

def down(p, L, final):
    KT = 32 if final else 112
    NST = KT // 8
    NS = 4
    tail = C.tail and not final
    sW, sOut, sWo = 12, 16, 28
    sMt, sNt, sWoff, sM0, sXoff, sS, sB, sR = 20, 21, 22, 23, 24, 25, 26, 27
    V = Alloc(VB, 253)
    vL16b = V("l16b"); vW = V("vW", 4); vAw = V("vAw", 2); vG = V("g", 4, 2); vOut = V("vOut")
    XF = [V(f"xf{i}", 16, 4) for i in range(NS)]
    WF = [V("wf0", 8, 4), V("wf1", 8, 4)]
    ACC = V("acc", 64, 4)
    if tail: AC2 = V("ac2", 64, 4)
    else: BF = V("bf", 8, 4)
    sc = "" if final else C.sc
    stamp(p, 0)
    ldsrd(p, sW, 16 if final else 48, KT*16*1024)
    if final or tail: ldsrd(p, sOut, 64, 0x200000)
    if tail: ldsrd(p, sWo, 16, 512*1024)
    p(f"""
    s_and_b32 s{sT}, s{sID}, 7
    s_lshl_b32 s{sMt}, s{sT}, 2
    s_bfe_u32 s{sT}, s{sID}, 0x20003
    s_add_u32 s{sMt}, s{sMt}, s{sT}
    s_lshr_b32 s{sNt}, s{sID}, 5
    v_add_u32 v{vL16b}, {KT*1024}, v{vL16}
    v_lshrrev_b32 v{t0}, 3, v{vL}
    v_lshlrev_b32 v{t0}, 10, v{t0}
    v_bfe_u32 v{t1}, v{vL}, 4, 1
    v_lshlrev_b32 v{t1}, 2, v{t1}
    v_xor_b32 v{t1}, v{t1}, v{vL}
    v_and_b32 v{t1}, 7, v{t1}
    v_lshl_add_u32 v{vW}, v{t1}, 4, v{t0}
    v_add_u32 v{vW+1}, 7168, v{vW}
    v_add_u32 v{vW+2}, {2*7168}, v{vW}
    v_add_u32 v{vW+3}, {3*7168}, v{vW}
    """)
    if final:
        p(f"""
        s_add_u32 s{sR}, s{sNt}, s{sT}
        s_and_b32 s{sR}, s{sR}, 3
        """)
    else:
        p(f"""
        s_mul_i32 s{sR}, s{sNt}, 7
        s_lshr_b32 s{sR}, s{sR}, 2
        s_mul_i32 s{sT}, s{sT}, 7
        s_lshr_b32 s{sT}, s{sT}, 1
        s_add_u32 s{sR}, s{sR}, s{sT}
        s_sub_u32 s{sT}, s{sR}, 14
        s_cmp_ge_u32 s{sR}, 14
        s_cselect_b32 s{sR}, s{sT}, s{sR}
        """)
    p(f"""
    s_mul_i32 s{sT}, s{sWave}, {NST}
    s_add_u32 s{sT}, s{sT}, s{sR}
    s_lshl_b32 s{sWoff}, s{sT}, 15
    s_lshl_b32 s{sT2}, s{sNt}, 7
    s_add_u32 s{sWoff}, s{sWoff}, s{sT2}
    s_lshl_b32 s{sM0}, s{sWave}, 14
    s_mul_i32 s{sXoff}, s{sMt}, {2*KT*1024}
    s_lshl_b32 s{sT}, s{sT}, 11
    s_add_u32 s{sXoff}, s{sXoff}, s{sT}
    s_add_u32 s{sXoff}, s{sXoff}, {WS_O if final else WS_H}
    s_lshl_b32 s{sB}, s{sID}, 13
    s_lshl_b32 s{sT}, s{sWave}, 11
    s_add_u32 s{sB}, s{sB}, s{sT}
    s_add_u32 s{sB}, s{sB}, {WS_B}
    """)
    def outaddr():
        p(f"""
        v_and_b32 v{t0}, 31, v{vL}
        v_lshrrev_b32 v{t1}, 1, v{vWv}
        v_lshl_add_u32 v{t0}, v{t1}, 5, v{t0}
        v_lshlrev_b32 v{vOut}, 10, v{t0}
        v_and_b32 v{t1}, 1, v{vWv}
        v_lshl_add_u32 v{vOut}, v{t1}, 6, v{vOut}
        v_lshrrev_b32 v{t1}, 5, v{vL}
        v_lshl_add_u32 v{vOut}, v{t1}, 4, v{vOut}
        """)
    def setup():
        tr_lane_addr(p, vAw, 1024, 128, 32)
        p(f"""
        v_bfe_u32 v{t0}, v{vL}, 3, 1
        v_lshl_add_u32 v{vAw}, v{t0}, 6, v{vAw}
        v_lshl_add_u32 v{vAw}, v{vWv}, 14, v{vAw}
        v_xor_b32 v{vAw+1}, 64, v{vAw}
        """)
        for i in range(64): p(f"v_mov_b32 v{ACC+i}, 0")
        if not final:
            for i in range(8): p(f"v_mov_b32 v{WF[1]+i}, 0")
            for i in range(8): p(f"v_mov_b32 v{XF[3]+8+i}, 0")
    fusedw = C.fused and not final
    if fusedw:
        setup()
        if tail: outaddr()
        p(f"""
        s_lshr_b32 s{sT3}, s{sMt}, 1
        s_lshl_b32 s{sT3}, s{sT3}, 6
        s_add_u32 s{sT3}, s{sT3}, {FH}
        s_waitcnt lgkmcnt(0)
        """)
        wait_flags(p, L, sT3, 14)
        if C.prio: p("s_setprio 0")
    else:
        p("s_waitcnt lgkmcnt(0)")
    stamp(p, 1)
    def wdma(p, srdw, soff):
        for j in range(4):
            p(f"buffer_load_dwordx4 v{vW+j}, s[{srdw}:{srdw+3}], s{soff} offen offset:{j*1024} lds")
    def dma(p, u):
        p(f"""
        s_add_u32 m0, s{sM0}, {u*4096}
        buffer_load_dwordx4 {vr(XF[u],4)}, v{vL16}, s[{sWS}:{sWS+3}], s{sXoff} offen{sc}
        buffer_load_dwordx4 v{vW}, s[{sW}:{sW+3}], s{sWoff} offen lds
        buffer_load_dwordx4 v{vW+1}, s[{sW}:{sW+3}], s{sWoff} offen offset:1024 lds
        buffer_load_dwordx4 {vr(XF[u]+4,4)}, v{vL16b}, s[{sWS}:{sWS+3}], s{sXoff} offen{sc}
        buffer_load_dwordx4 v{vW+2}, s[{sW}:{sW+3}], s{sWoff} offen offset:2048 lds
        buffer_load_dwordx4 v{vW+3}, s[{sW}:{sW+3}], s{sWoff} offen offset:3072 lds
        buffer_load_dwordx4 {vr(XF[u]+8,4)}, v{vL16}, s[{sWS}:{sWS+3}], s{sXoff} offen offset:1024{sc}
        buffer_load_dwordx4 {vr(XF[u]+12,4)}, v{vL16b}, s[{sWS}:{sWS+3}], s{sXoff} offen offset:1024{sc}
        s_add_u32 s{sR}, s{sR}, 1
        s_cmp_eq_u32 s{sR}, {NST}
        s_cselect_b32 s{sT}, {1-NST}, 1
        s_lshl_b32 s{sT2}, s{sT}, 15
        s_add_u32 s{sWoff}, s{sWoff}, s{sT2}
        s_lshl_b32 s{sT2}, s{sT}, 11
        s_add_u32 s{sXoff}, s{sXoff}, s{sT2}
        """)
    npro = NS if final else NS-1
    for i in range(npro): dma(p, i)
    if final:
        outaddr()
        p(f"""
        v_lshlrev_b32 v{t1}, 2, v{t0}
        s_lshl_b32 s{sT}, s{sMt}, 8
        s_add_u32 s{sT}, s{sT}, {WS_G}
        buffer_load_dword v{vG}, v{t1}, s[{sWS}:{sWS+3}], s{sT} offen
        buffer_load_dwordx4 {vr(BF,4)}, v{vL16}, s[{sWS}:{sWS+3}], s{sB} offen
        buffer_load_dwordx4 {vr(BF+4,4)}, v{vL16}, s[{sWS}:{sWS+3}], s{sB} offen offset:1024
        """)
    if not fusedw: setup()
    def reads(p, u, ks, b):
        for t in range(2):
            for ab in range(2):
                p(f"ds_read_b64_tr_b16 {vr(WF[b]+4*t+2*ab,2)}, v{vAw+t} offset:{u*4096 + ks*2048 + ab*512}")
    def mfmas(p, b, xf, acc=ACC, zero=False):
        for mi in range(2):
            for t in range(2):
                A = acc + 16*(2*mi+t)
                p(f"{MFMA} {vr(A,16)}, {vr(WF[b]+4*t,4)}, {vr(xf+4*mi,4)}, {'0' if zero else vr(A,16)}")
    if STAMP:
        p(f"s_waitcnt vmcnt({27 if final else 16})")
        stamp(p, 2)
    if final:
        for u in range(4):
            p(f"s_waitcnt vmcnt({8*(3-u)+3})")
            reads(p, u, 0, 0)
            reads(p, u, 1, 1)
            p("s_waitcnt lgkmcnt(4)")
            mfmas(p, 0, XF[u])
            p("s_waitcnt lgkmcnt(0)")
            mfmas(p, 1, XF[u]+8)
    else:
        p(f"s_mov_b32 s{sS}, 0")
        p(f"{L}_loop:")
        for u in range(4):
            p(f"s_waitcnt vmcnt({8*(NS-2)}) lgkmcnt(0)")
            reads(p, u, 0, 0)
            mfmas(p, 1, XF[(u+3) % 4]+8)
            if u == 2:
                p(f"""
                s_cmp_eq_u32 s{sS}, 3
                s_cbranch_scc1 {L}_done
                """)
            if u == 3:
                p(f"""
                s_cmp_eq_u32 s{sS}, 2
                s_cselect_b32 s{sXoff}, {OOB}, s{sXoff}
                s_cselect_b32 s{sWoff}, {OOB}, s{sWoff}
                """)
            reads(p, u, 1, 1)
            p("s_waitcnt lgkmcnt(4)")
            weave(p, lines(mfmas, 0, XF[u]), (0, 3, chunks(lines(dma, (u+3) % 4))))
        p(f"""
        s_add_u32 s{sS}, s{sS}, 1
        s_branch {L}_loop
        {L}_done:
        """)
    stamp(p, 3)
    if tail:
        dstamp(p, 6)
        if C.prio: p("s_setprio 2")
        p(f"""
        s_waitcnt vmcnt(0) lgkmcnt(0)
        s_lshl_b32 s{sWoff}, s{sWave}, 17
        s_lshl_b32 s{sT2}, s{sNt}, 7
        s_add_u32 s{sWoff}, s{sWoff}, s{sT2}
        v_and_b32 v{t0}, 31, v{vL}
        v_lshlrev_b32 v{t1}, 2, v{t0}
        s_lshl_b32 s{sT}, s{sMt}, 8
        s_add_u32 s{sT}, s{sT}, {WS_G}
        buffer_load_dword v{vG}, v{t1}, s[{sWS}:{sWS+3}], s{sT} offen sc1
        buffer_load_dword v{vG+2}, v{t1}, s[{sWS}:{sWS+3}], s{sT} offen offset:128 sc1
        """)
        for u in range(4):
            p(f"s_add_u32 m0, s{sM0}, {u*4096}")
            p("s_nop 0")
            wdma(p, sWo, sWoff)
            p(f"s_add_u32 s{sWoff}, s{sWoff}, 32768")
        p(f"""
        s_lshl_b32 s{sXoff}, s{sMt}, 16
        s_lshl_b32 s{sT}, s{sWave}, 13
        s_add_u32 s{sXoff}, s{sXoff}, s{sT}
        s_add_u32 s{sXoff}, s{sXoff}, {WS_O}
        v_add_u32 v{vL16b}, 32768, v{vL16}
        s_lshr_b32 s{sT3}, s{sMt}, 2
        s_lshl_b32 s{sT3}, s{sT3}, 7
        s_add_u32 s{sT3}, s{sT3}, {FO}
        s_waitcnt vmcnt(16)
        """)
        for mi in range(2):
            p(f"""
            v_sub_f32 v{t0}, 1.0, v{vG+2*mi}
            v_cvt_pk_bf16_f32 v{t0}, v{t0}, v{t0}
            v_lshlrev_b32 v{t0}, 16, v{t0}
            v_mov_b32 v{vG+2*mi+1}, v{vG+2*mi}
            """)
            for i in range(32): p(f"v_mul_f32 v{ACC+32*mi+i}, v{ACC+32*mi+i}, v{t0}")
        wait_flags(p, L + "_o", sT3, 32)
        stamp(p, 5)
        for u in range(4):
            p(f"buffer_load_dwordx4 {vr(XF[u],4)}, v{vL16}, s[{sWS}:{sWS+3}], s{sXoff} offen offset:{(u%2)*2048} sc1")
            p(f"buffer_load_dwordx4 {vr(XF[u]+4,4)}, v{vL16b}, s[{sWS}:{sWS+3}], s{sXoff} offen offset:{(u%2)*2048} sc1")
            p(f"buffer_load_dwordx4 {vr(XF[u]+8,4)}, v{vL16}, s[{sWS}:{sWS+3}], s{sXoff} offen offset:{(u%2)*2048+1024} sc1")
            p(f"buffer_load_dwordx4 {vr(XF[u]+12,4)}, v{vL16b}, s[{sWS}:{sWS+3}], s{sXoff} offen offset:{(u%2)*2048+1024} sc1")
            if u == 1: p(f"s_add_u32 s{sXoff}, s{sXoff}, 4096")
        p("s_waitcnt vmcnt(16)")
        reads(p, 0, 0, 0)
        for u in range(4):
            reads(p, u, 1, 1)
            p(f"s_waitcnt vmcnt({4*(3-u)+2}) lgkmcnt(4)")
            mfmas(p, 0, XF[u], AC2, u == 0)
            if u < 3: reads(p, u+1, 0, 0)
            p(f"s_waitcnt vmcnt({4*(3-u)}) lgkmcnt({4 if u < 3 else 0})")
            mfmas(p, 1, XF[u]+8, AC2)
        stamp(p, 6)
        p("s_nop 9")
        for j in range(4):
            for i in range(8):
                p(f"v_pk_fma_f32 {vr(ACC+16*j+2*i,2)}, {vr(AC2+16*j+2*i,2)}, {vr(vG+2*(j//2),2)}, {vr(ACC+16*j+2*i,2)}")
    p(f"""
    s_waitcnt vmcnt(0) lgkmcnt(0)
    s_barrier
    v_lshl_add_u32 v{t0}, v{vWv}, 12, v{vL16}
    v_lshl_add_u32 v{t1}, v{vWv}, 14, v{vL16}
    s_nop 9
    """)
    for j in range(4):
        for q in range(4):
            p(f"ds_write_b128 v{t0}, {vr(ACC+16*j+4*q,4)} offset:{j*16384 + q*1024}")
    p(f"""
    s_waitcnt lgkmcnt(0)
    s_barrier
    """)
    for w in range(4):
        for q in range(4):
            p(f"ds_read_b128 {vr(ACC+16*w+4*q,4)}, v{t1} offset:{w*4096 + q*1024}")
    p("s_waitcnt lgkmcnt(8)")
    for i in range(8): p(f"v_pk_add_f32 {vr(ACC+2*i,2)}, {vr(ACC+2*i,2)}, {vr(ACC+16+2*i,2)}")
    p("s_waitcnt lgkmcnt(0)")
    for i in range(8): p(f"v_pk_add_f32 {vr(ACC+32+2*i,2)}, {vr(ACC+32+2*i,2)}, {vr(ACC+48+2*i,2)}")
    for i in range(8): p(f"v_pk_add_f32 {vr(ACC+2*i,2)}, {vr(ACC+2*i,2)}, {vr(ACC+32+2*i,2)}")
    if final or tail:
        p(f"""
        s_lshl_b32 s{sT}, s{sMt}, 16
        s_lshl_b32 s{sT2}, s{sNt}, 7
        s_add_u32 s{sT}, s{sT}, s{sT2}
        """)
    if final:
        p(f"""
        v_sub_f32 v{t0}, 1.0, v{vG}
        v_cvt_pk_bf16_f32 v{t0}, v{t0}, v{t0}
        v_lshlrev_b32 v{t0}, 16, v{t0}
        """)
        for i in range(8):
            p(f"v_lshlrev_b32 v{ACC+16+2*i}, 16, v{BF+i}")
            p(f"v_and_b32 v{ACC+17+2*i}, 0xffff0000, v{BF+i}")
        for i in range(16):
            p(f"v_mul_f32 v{ACC+i}, v{ACC+i}, v{vG}")
            p(f"v_fmac_f32 v{ACC+i}, v{ACC+16+i}, v{t0}")
    for i in range(8): p(f"v_cvt_pk_bf16_f32 v{ACC+i}, v{ACC+2*i}, v{ACC+2*i+1}")
    if final or tail:
        p(f"buffer_store_dwordx4 {vr(ACC,4)}, v{vOut}, s[{sOut}:{sOut+3}], s{sT} offen")
        p(f"buffer_store_dwordx4 {vr(ACC+4,4)}, v{vOut}, s[{sOut}:{sOut+3}], s{sT} offen offset:32")
    else:
        p(f"buffer_store_dwordx4 {vr(ACC,4)}, v{vL16}, s[{sWS}:{sWS+3}], s{sB} offen")
        p(f"buffer_store_dwordx4 {vr(ACC+4,4)}, v{vL16}, s[{sWS}:{sWS+3}], s{sB} offen offset:1024")
    stamp_out(p, 4 if final else 3, 8 if tail else 5)
    return V.next

def single(name, body):
    p = Prog()
    p(f"""
    s_cmp_ge_u32 s2, 256
    s_cbranch_scc1 {name}_end
    s_mov_b32 s{sID}, s2
    """)
    common(p)
    nv = body(p, name)
    p(f"{name}_end:")
    p("s_endpgm")
    return (name, p.text(), nv, LDS_WG, 256)
def dual(name, a, b):
    p = Prog()
    p(f"""
    s_cmp_ge_u32 s2, 512
    s_cbranch_scc1 {name}_end
    s_and_b32 s{sID}, s2, 255
    """)
    common(p)
    p(f"""
    s_cmp_ge_u32 s2, 256
    s_cbranch_scc1 {name}_b
    """)
    na = a(p, name + "_A")
    p(f"{name}_end:")
    p("s_endpgm")
    p(f"{name}_b:")
    nb = b(p, name + "_B")
    p("s_endpgm")
    return (name, p.text(), max(na, nb, 129), LDS_WG, 512)

def emit(ks, path):
    out = "; generated by gen3.py (hand-written generator)\n"
    for n, txt, nv, lds, g in ks:
        if len(ks) == 1 and n == NAME + "_kernel" and not os.environ.get("LIST"):
            out += f"; @launch grid=({g},1,1) block=(256,1,1) lds={lds}\n"
        else:
            out += f"; @launch kernel={n} grid=({g},1,1) block=(256,1,1) lds={lds}\n"
    out += '.amdgcn_target "amdgcn-amd-amdhsa--gfx950"\n.text\n'
    for n, txt, nv, lds, g in ks: out += kernel_header(n) + txt
    out += '.section .rodata,"a"\n'
    for n, txt, nv, lds, g in ks:
        out += ".p2align 6\n" + kernel_desc(n, nv)
        print(n, "vgprs", nv, "lds", lds, "lines", txt.count("\n"), file=sys.stderr)
    open(path, "w").write(out)

dn = lambda p, L: down(p, L, False)
fn = lambda p, L: down(p, L, True)
def build(cfg, path):
    if cfg == "sep":
        ks = [single("qkv_kernel", qkv), single("up_kernel", up), single("attn_kernel", attn), single("down_kernel", dn), single("fin_kernel", fn)]
    elif cfg == "B3":
        ks = [dual("k1_kernel", qkv, up), dual("k2_kernel", attn, dn), single("fin_kernel", fn)]
    elif cfg in ("P2", "P1"):
        C.fused = True; C.sc = " sc1"; C.tail = cfg == "P1"; C.prio = int(os.environ.get("PRIO", "0"))
        def A(p, L):
            dstamp(p, 1, True); a = qkv(p, L + "q"); dstamp(p, 2); b = attn(p, L + "a"); dstamp(p, 4)
            return max(a, b, 256)
        def B(p, L):
            a = up(p, L + "u"); dstamp(p, 5); b = dn(p, L + "d")
            if DSTAMP: p("s_waitcnt vmcnt(0)")
            dstamp(p, 7)
            return max(a, b)
        ks = [dual(NAME + "_kernel", A, B)]
        if cfg == "P2":
            C.fused = False; C.sc = ""
            ks.append(single("fin_kernel", fn))
    elif cfg == "q2":
        k = single("qkv_kernel", qkv); ks = [k]; rep = 3
    elif cfg == "u2":
        k = single("up_kernel", up); ks = [k]; rep = 3
    elif cfg == "d2":
        k = single("down_kernel", dn); ks = [k]; rep = 3
    elif cfg == "f2":
        k = single("fin_kernel", fn); ks = [k]; rep = 3
    emit(ks, path)
    if cfg[1] == "2" and cfg[0] != "P":
        t = open(path).read().split("\n")
        t = [t[0], t[1], t[1]] + t[1:]
        open(path, "w").write("\n".join(t))

if __name__ == "__main__":
    build(sys.argv[1], sys.argv[2] if len(sys.argv) > 2 else f"cdna_kernels/{NAME}.s")
```

```python
import sys, math, os, struct
from asmlib import *

NAME = "gated_mix__softmax_full_mha__geglu_ffn__prompt"
WS_Q  = 0
WS_KV = 2 << 20
WS_H  = 8 << 20
WS_O  = 16 << 20
WS_B  = 18 << 20
WS_G  = 20 << 20
WS_FL = (20 << 20) + 0x10000
WS_ST = (20 << 20) + 0x80000
WS_USED = 22 << 20
OOB = 0x40000000
LOG2E = 1.4426950408889634
def f32(x): return "0x%08x" % struct.unpack("<I", struct.pack("<f", x))[0]
STAMP = int(os.environ.get("STAMP", "0"))
MFMA = "v_mfma_f32_32x32x16_bf16"
SMF = "v_smfmac_f32_32x32x32_bf16"
LDS_WG = 81920

sID = 3
sWS = 4
sWave = 8
sT, sT2, sT3 = 9, 10, 11
vL, vWv, vL16, t0, t1 = 1, 2, 3, 4, 5
VB = 6

DSTAMP = int(os.environ.get("DSTAMP", "0"))
def dstamp(p, idx, inv=False): pass
DMAP = {(0,0):1, (0,1):2, (0,2):3, (0,3):4, (0,4):5, (2,1):6, (2,2):7, (2,3):8, (1,1):9, (1,2):10, (1,3):11, (1,4):12, (3,1):13, (3,3):14, (3,7):15}
def stamp(p, i):
    if STAMP:
        p(f"s_memrealtime s[{64+2*i}:{65+2*i}]")
        p(f"s_memtime s[{80+2*i}:{81+2*i}]")
        p("s_waitcnt lgkmcnt(0)")
def stamp_out(p, kid, n=5):
    if STAMP:
        p("s_waitcnt vmcnt(0)")
        stamp(p, n-1)
        if DSTAMP:
            p(f"""
            s_lshl_b32 s60, s{sID}, 2
            s_add_u32 s60, s60, s{sWave}
            s_cmp_lg_u32 s60, {DSTAMP*4+1}
            s_cbranch_scc1 dso{kid}
            v_mov_b32 v{t0}, 0
            s_mov_b64 exec, 1
            """)
            for i in range(n):
                if (kid, i) in DMAP:
                    p(f"v_mov_b32 v{t1}, s{64+2*i}")
                    p(f"buffer_store_dword v{t1}, v{t0}, s[{sDbg}:{sDbg+3}], 0 offen offset:{4*DMAP[(kid,i)]}")
            p("s_mov_b64 exec, -1")
            p(f"dso{kid}:")
            return
        p(f"""
        s_lshl_b32 s60, s{sID}, 3
        s_add_u32 s60, s60, s{sWave}
        s_lshl_b32 s60, s60, 6
        s_add_u32 s60, s60, {WS_ST + kid*131072}
        v_mov_b32 v{t0}, 0
        s_mov_b64 exec, 1
        """)
        for i in range(n):
            p(f"v_mov_b32 v{t1}, s{64+2*i}")
            p(f"buffer_store_dword v{t1}, v{t0}, s[{sWS}:{sWS+3}], s60 offen offset:{4*i}")
            p(f"v_mov_b32 v{t1}, s{80+2*i}")
            p(f"buffer_store_dword v{t1}, v{t0}, s[{sWS}:{sWS+3}], s60 offen offset:{32+4*i}")
        p("s_mov_b64 exec, -1")

def common(p):
    p(f"""
    s_load_dwordx2 s[{sWS}:{sWS+1}], s[0:1], 80
    v_and_b32 v{vL}, 63, v0
    v_lshrrev_b32 v{vWv}, 6, v0
    s_mov_b32 s{sWS+2}, {WS_USED:#x}
    v_readfirstlane_b32 s{sWave}, v{vWv}
    s_mov_b32 s{sWS+3}, 0x20000
    v_lshlrev_b32 v{vL16}, 4, v{vL}
    """)
    if C.fused: ldsrd(p, sDbg, 72, 256)
def ldsrd(p, d, off, nbytes):
    p(f"""
    s_load_dwordx2 s[{d}:{d+1}], s[0:1], {off}
    s_mov_b32 s{d+2}, {nbytes:#x}
    s_mov_b32 s{d+3}, 0x20000
    """)
def tr_lane_addr(p, vd, hstride, rowbytes, nhbytes):
    p(f"""
    v_lshrrev_b32 v{t0}, 5, v{vL}
    v_mul_u32_u24 v{vd}, {hstride}, v{t0}
    v_bfe_u32 v{t0}, v{vL}, 2, 2
    v_mul_u32_u24 v{t0}, {rowbytes}, v{t0}
    v_bfe_u32 v{t1}, v{vL}, 4, 1
    v_mul_u32_u24 v{t1}, {nhbytes}, v{t1}
    v_add3_u32 v{vd}, v{vd}, v{t0}, v{t1}
    v_and_b32 v{t0}, 1, v{vL}
    v_and_b32 v{t1}, 2, v{vL}
    v_lshl_add_u32 v{vd}, v{t0}, 4, v{vd}
    v_lshl_add_u32 v{vd}, v{t1}, 2, v{vd}
    """)
def xfrag_addr(p, vd):
    p(f"""
    v_and_b32 v{t0}, 31, v{vL}
    v_lshlrev_b32 v{vd}, 7, v{t0}
    v_bfe_u32 v{t0}, v{vL}, 1, 3
    v_lshrrev_b32 v{t1}, 5, v{vL}
    v_xor_b32 v{t0}, v{t0}, v{t1}
    v_lshl_add_u32 v{vd}, v{t0}, 4, v{vd}
    """)

def lines(fn, *a):
    q = Prog(); fn(q, *a); return [l.strip() for l in q.lines]
def chunks(ls):
    out, cur = [], []
    for l in ls:
        cur.append(l)
        if l.startswith("buffer_"):
            out.append(cur); cur = []
    if cur: out[-1] = out[-1] + cur
    return out
def weave(p, mf, *streams):
    n = len(mf)
    after = [[] for _ in range(n)]
    for first, last, items in streams:
        k = len(items); span = last - first + 1
        for i, it in enumerate(items):
            after[first + (i*span)//k] += [it] if isinstance(it, str) else list(it)
    for i in range(n):
        p(mf[i])
        for l in after[i]: p(l)

class Cfg:
    sc = ""
    fused = False
    tail = False
    prio = 0
C = Cfg()
sDbg = 44
sTag = 48
sCnt = 49
vTag = 255
FQ, FO, FH = WS_FL, WS_FL + 1024, WS_FL + 2048
SPIN_MAX = 1 << 17

def tag_prefetch(p):
    if C.fused:
        p(f"v_mov_b32 v{vTag}, 0")
        p(f"buffer_load_dword v{vTag}, v{vTag}, s[{sDbg}:{sDbg+3}], 0 offen sc1")
def tag_get(p, L):
    p(f"""
    s_mov_b32 s{sCnt}, 0
    {L}_tg:
    v_readfirstlane_b32 s{sTag}, v{vTag}
    s_add_u32 s{sCnt}, s{sCnt}, 1
    s_cmp_lg_u32 s{sTag}, 0
    s_cbranch_scc1 {L}_tgd
    s_cmp_gt_u32 s{sCnt}, {SPIN_MAX}
    s_cbranch_scc1 {L}_tgd
    s_sleep 4
    v_mov_b32 v{vTag}, 0
    buffer_load_dword v{vTag}, v{vTag}, s[{sDbg}:{sDbg+3}], 0 offen sc1
    s_waitcnt vmcnt(0)
    s_branch {L}_tg
    {L}_tgd:
    """)
def signal(p, L, sOff, need_tag):
    p(f"""
    s_waitcnt vmcnt(0)
    s_barrier
    s_cmp_lg_u32 s{sWave}, 0
    s_cbranch_scc1 {L}_sg
    """)
    if need_tag: tag_get(p, L)
    p(f"""
    v_mov_b32 v{t0}, 0
    v_mov_b32 v{t1}, s{sTag}
    s_mov_b64 exec, 1
    buffer_store_dword v{t1}, v{t0}, s[{sWS}:{sWS+3}], s{sOff} offen sc1
    s_mov_b64 exec, -1
    {L}_sg:
    """)
def wait_flags(p, L, sOff, n):
    p(f"""
    s_cmp_lg_u32 s{sWave}, 0
    s_cbranch_scc1 {L}_wd
    v_min_u32 v{t0}, {n-1}, v{vL}
    v_lshlrev_b32 v{t0}, 2, v{t0}
    s_mov_b32 s{sCnt}, 0
    {L}_wl:
    buffer_load_dword v{t1}, v{t0}, s[{sWS}:{sWS+3}], s{sOff} offen sc1
    s_add_u32 s{sCnt}, s{sCnt}, 1
    s_waitcnt vmcnt(0)
    v_cmp_ne_u32 vcc, s{sTag}, v{t1}
    s_cmp_gt_u32 s{sCnt}, {SPIN_MAX}
    s_cbranch_scc1 {L}_wd
    s_cbranch_vccz {L}_wd
    s_sleep 1
    s_branch {L}_wl
    {L}_wd:
    s_barrier
    """)
def tag_publish(p, L):
    F = 8
    p(f"""
    s_mov_b32 s{sT}, {WS_FL}
    s_waitcnt lgkmcnt(0)
    buffer_load_dwordx4 {vr(F,4)}, v{vL16}, s[{sWS}:{sWS+3}], s{sT} offen sc1
    buffer_load_dwordx4 {vr(F+4,4)}, v{vL16}, s[{sWS}:{sWS+3}], s{sT} offen offset:1024 sc1
    buffer_load_dwordx4 {vr(F+8,4)}, v{vL16}, s[{sWS}:{sWS+3}], s{sT} offen offset:2048 sc1
    s_waitcnt vmcnt(0)
    v_readfirstlane_b32 s{sTag}, v{F}
    {L}_tp:
    s_add_u32 s{sTag}, s{sTag}, 1
    s_cmp_eq_u32 s{sTag}, 0
    s_cbranch_scc1 {L}_tp
    s_mov_b64 s[50:51], 0
    """)
    for i in range(12):
        p(f"v_cmp_eq_u32 vcc, s{sTag}, v{F+i}")
        p(f"s_or_b64 s[50:51], s[50:51], vcc")
    p(f"""
    s_cmp_lg_u64 s[50:51], 0
    s_cbranch_scc1 {L}_tp
    v_mov_b32 v{t0}, 0
    v_mov_b32 v{vTag}, s{sTag}
    s_mov_b64 exec, 1
    buffer_store_dword v{vTag}, v{t0}, s[{sDbg}:{sDbg+3}], 0 offen sc1
    s_mov_b64 exec, -1
    """)

def qkv(p, L):
    sX, sW = 12, 16
    sMt, sHg, sXb, sWb, sU, sXo, sWo, sI, sMx, sMw = 20, 21, 22, 23, 24, 25, 26, 27, 28, 29
    V = Alloc(VB, 252)
    vX = V("vX"); vW = V("vW"); vAx = V("vAx", 4); vAw = V("vAw")
    XF = [V("xf0", 4, 4), V("xf1", 4, 4)]
    WF = [V("wf0", 12, 4), V("wf1", 12, 4)]
    ACC = V("acc", 48, 4)
    XR = 49152
    stamp(p, 0)
    ldsrd(p, sX, 0, 0x200000)
    ldsrd(p, sW, 8, 0x180000)
    p(f"""
    s_and_b32 s{sT}, s{sID}, 3
    s_lshl_b32 s{sMt}, s{sT}, 3
    s_bfe_u32 s{sT}, s{sID}, 0x30003
    s_add_u32 s{sMt}, s{sMt}, s{sT}
    s_and_b32 s{sHg}, s{sID}, 4
    s_lshr_b32 s{sT2}, s{sID}, 6
    s_add_u32 s{sHg}, s{sHg}, s{sT2}
    s_lshl_b32 s{sT2}, s{sT2}, 1
    s_add_u32 s{sU}, s{sT}, s{sT2}
    s_lshl_b32 s{sU}, s{sU}, 1
    s_lshl_b32 s{sXb}, s{sMt}, 16
    s_lshl_b32 s{sWb}, s{sHg}, 7
    v_lshrrev_b32 v{t0}, 3, v0
    v_lshlrev_b32 v{vX}, 10, v{t0}
    v_mul_u32_u24 v{vW}, 3072, v{t0}
    v_lshrrev_b32 v{t0}, 4, v0
    v_xor_b32 v{t1}, v{t0}, v{vL}
    v_and_b32 v{t1}, 7, v{t1}
    v_lshl_add_u32 v{vX}, v{t1}, 4, v{vX}
    v_lshlrev_b32 v{t0}, 2, v{t0}
    v_xor_b32 v{t1}, v{t0}, v{vL}
    v_and_b32 v{t1}, 7, v{t1}
    v_lshl_add_u32 v{vW}, v{t1}, 4, v{vW}
    s_lshl_b32 s{sMx}, s{sWave}, 10
    s_add_u32 s{sMx}, s{sMx}, {XR}
    s_mul_i32 s{sMw}, s{sWave}, 3072
    s_mov_b32 s{sI}, 0
    s_bfe_u32 s{sT}, s{sU}, 0x30001
    s_lshl_b32 s{sT}, s{sT}, 7
    s_add_u32 s{sXo}, s{sXb}, s{sT}
    s_mov_b32 m0, s{sMx}
    s_waitcnt lgkmcnt(0)
    """)
    stamp(p, 1)
    p(f"buffer_load_dwordx4 v{vX}, s[{sX}:{sX+3}], s{sXo} offen lds")
    def group(p, par, wslot):
        p(f"""
        s_and_b32 s{sT}, s{sU}, 15
        s_mul_i32 s{sWo}, s{sT}, {32*3072}
        s_add_u32 m0, s{sMw}, {wslot*12288}
        s_add_u32 s{sWo}, s{sWo}, s{sWb}
        buffer_load_dwordx4 v{vW}, s[{sW}:{sW+3}], s{sWo} offen lds
        buffer_load_dwordx4 v{vW}, s[{sW}:{sW+3}], s{sWo} offen offset:1024 lds
        buffer_load_dwordx4 v{vW}, s[{sW}:{sW+3}], s{sWo} offen offset:2048 lds
        s_add_u32 s{sU}, s{sU}, 1
        s_add_u32 s{sI}, s{sI}, 1
        s_bfe_u32 s{sT}, s{sU}, 0x30001
        s_lshl_b32 s{sT}, s{sT}, 7
        s_add_u32 s{sXo}, s{sXb}, s{sT}
        """)
        p(f"""
        s_and_b32 s{sT}, s{sI}, 7
        s_lshl_b32 s{sT}, s{sT}, 12
        s_add_u32 m0, s{sMx}, s{sT}
        """)
        if par == 0:
            p(f"s_add_u32 s{sXo}, s{sXo}, 32768")
        else:
            p(f"""
            s_cmp_eq_u32 s{sI}, 16
            s_cselect_b32 s{sXb}, {OOB}, s{sXb}
            s_cselect_b32 s{sXo}, {OOB}, s{sXo}
            s_cselect_b32 s{sWb}, {OOB}, s{sWb}
            """)
        p(f"buffer_load_dwordx4 v{vX}, s[{sX}:{sX+3}], s{sXo} offen lds")
    group(p, 0, 0); group(p, 1, 1); group(p, 0, 2)
    xfrag_addr(p, vAx)
    p(f"""
    v_lshrrev_b32 v{t0}, 1, v{vWv}
    v_lshl_add_u32 v{vAx}, v{t0}, 12, v{vAx}
    v_add_u32 v{vAx}, {XR}, v{vAx}
    v_xor_b32 v{vAx+1}, 32, v{vAx}
    v_xor_b32 v{vAx+2}, 64, v{vAx}
    v_xor_b32 v{vAx+3}, 96, v{vAx}
    """)
    tr_lane_addr(p, vAw, 3072, 128, 32)
    p(f"""
    v_lshrrev_b32 v{t0}, 3, v{vL}
    v_xor_b32 v{t0}, v{t0}, v{vWv}
    v_and_b32 v{t0}, 1, v{t0}
    v_lshl_add_u32 v{vAw}, v{t0}, 6, v{vAw}
    """)
    for i in range(48): p(f"v_mov_b32 v{ACC+i}, 0")
    for i in range(4): p(f"v_mov_b32 v{XF[1]+i}, 0")
    for i in range(12): p(f"v_mov_b32 v{WF[1]+i}, 0")
    def reads(p, u, ks, b):
        p(f"ds_read_b128 {vr(XF[b],4)}, v{vAx + 2*(u%2) + ks} offset:{(u//2)*8192}")
        for t in range(3):
            for ab in range(2):
                p(f"ds_read_b64_tr_b16 {vr(WF[b]+4*t+2*ab,2)}, v{vAw} offset:{u*12288 + ks*6144 + t*1024 + ab*512}")
    def mfmas(p, b):
        p(f"{MFMA} {vr(ACC,16)}, {vr(WF[b],4)}, {vr(XF[b],4)}, {vr(ACC,16)}")
        p(f"{MFMA} {vr(ACC+16,16)}, {vr(WF[b]+4,4)}, {vr(XF[b],4)}, {vr(ACC+16,16)}")
        p(f"{MFMA} {vr(ACC+32,16)}, {vr(XF[b],4)}, {vr(WF[b]+8,4)}, {vr(ACC+32,16)}")
    if STAMP:
        p("s_waitcnt vmcnt(8)")
        stamp(p, 2)
    p(f"{L}_loop:")
    for u in range(4):
        p("s_waitcnt vmcnt(8) lgkmcnt(0)")
        p("s_barrier")
        g = chunks(lines(group, (u+3) % 2, (u+3) % 4))
        r0 = lines(reads, u, 0, 0); r1 = lines(reads, u, 1, 1)
        for l in r0[:3]: p(l)
        weave(p, lines(mfmas, 1), (0, 1, r0[3:]), (0, 2, g[:2] + [["s_waitcnt lgkmcnt(0)"]]))
        weave(p, lines(mfmas, 0), (0, 2, r1), (0, 1, g[2:]))
    for i in range(4): p(f"v_xor_b32 v{vAx+i}, {49152 ^ 65536}, v{vAx+i}")
    p(f"""
    s_cmp_lt_u32 s{sI}, 19
    s_cbranch_scc1 {L}_loop
    s_waitcnt lgkmcnt(0)
    """)
    mfmas(p, 1)
    stamp(p, 3)
    tag_prefetch(p)
    sQ, sKV = 20, 22
    vKo, vVo = vX, vW
    p(f"""
    s_lshl_b32 s26, s{sHg}, 5
    s_add_u32 s26, s26, s{sMt}
    s_lshl_b32 s26, s26, 2
    s_add_u32 s26, s26, {FQ}
    s_lshl_b32 s{sT}, s{sMt}, 1
    s_lshr_b32 s{sT2}, s{sWave}, 1
    s_add_u32 s{sT}, s{sT}, s{sT2}
    s_lshl_b32 s{sT2}, s{sHg}, 8
    s_add_u32 s{sT}, s{sT}, s{sT2}
    s_and_b32 s{sT2}, s{sWave}, 1
    s_lshl_b32 s{sT2}, s{sT2}, 7
    s_add_u32 s{sT}, s{sT}, s{sT2}
    s_lshl_b32 s{sQ}, s{sT}, 10
    s_lshl_b32 s{sKV}, s{sT}, 11
    s_add_u32 s{sKV}, s{sKV}, {WS_KV}
    s_mov_b32 s24, {f32(0.25*LOG2E)}
    s_mov_b32 s25, {f32(0.25*LOG2E)}
    v_and_b32 v{t0}, 0x33, v{vL}
    v_and_b32 v{t1}, 4, v{vL}
    v_lshl_or_b32 v{t0}, v{t1}, 1, v{t0}
    v_and_b32 v{t1}, 8, v{vL}
    v_lshrrev_b32 v{t1}, 1, v{t1}
    v_or_b32 v{t0}, v{t0}, v{t1}
    v_lshlrev_b32 v{vKo}, 4, v{t0}
    v_and_b32 v{t1}, 15, v{vL}
    v_lshlrev_b32 v{vVo}, 4, v{t1}
    v_bfe_u32 v{t0}, v{vL}, 4, 1
    v_lshl_add_u32 v{vVo}, v{t0}, 17, v{vVo}
    v_lshrrev_b32 v{t0}, 5, v{vL}
    v_lshl_add_u32 v{vVo}, v{t0}, 8, v{vVo}
    s_add_u32 s{sT}, s{sQ}, 65536
    s_add_u32 s{sT2}, s{sKV}, 131072
    """)
    for t in (1, 2, 0):
        if t == 0:
            for i in range(8): p(f"v_pk_mul_f32 {vr(ACC+2*i,2)}, {vr(ACC+2*i,2)}, s[24:25]")
        for i in range(8):
            p(f"v_cvt_pk_bf16_f32 v{ACC+16*t+i}, v{ACC+16*t+2*i}, v{ACC+16*t+2*i+1}")
        if t == 0:
            p(f"buffer_store_dwordx4 {vr(ACC,4)}, v{vL16}, s[{sWS}:{sWS+3}], s{sQ} offen{C.sc}")
            p(f"buffer_store_dwordx4 {vr(ACC+4,4)}, v{vL16}, s[{sWS}:{sWS+3}], s{sT} offen{C.sc}")
        elif t == 1:
            p(f"buffer_store_dwordx4 {vr(ACC+16,4)}, v{vKo}, s[{sWS}:{sWS+3}], s{sKV} offen{C.sc}")
            p(f"buffer_store_dwordx4 {vr(ACC+20,4)}, v{vKo}, s[{sWS}:{sWS+3}], s{sT2} offen{C.sc}")
        else:
            p(f"buffer_store_dwordx4 {vr(ACC+32,4)}, v{vVo}, s[{sWS}:{sWS+3}], s{sKV} offen offset:1024{C.sc}")
            p(f"buffer_store_dwordx4 {vr(ACC+36,4)}, v{vVo}, s[{sWS}:{sWS+3}], s{sKV} offen offset:1536{C.sc}")
    if C.fused: signal(p, L, 26, True)
    stamp_out(p, 0)
    return V.next

def gate(p, L):
    sX, sG = 12, 40
    sI, sXo, sGo = 37, 38, 39
    V = Alloc(VB, 252)
    vA = V("a"); GW = V("gw", 4, 4); GX = V("gx", 8, 4)
    ldsrd(p, sG, 56, 1024)
    p(f"""
    s_lshl_b32 s{sXo}, s{sT3}, 2
    s_add_u32 s{sXo}, s{sXo}, s{sWave}
    s_lshl_b32 s{sGo}, s{sXo}, 4
    s_add_u32 s{sGo}, s{sGo}, {WS_G}
    s_lshl_b32 s{sXo}, s{sXo}, 12
    v_lshrrev_b32 v{vA}, 5, v{vL}
    v_lshlrev_b32 v{vA}, 2, v{vA}
    s_waitcnt lgkmcnt(0)
    buffer_load_dwordx4 {vr(GW,4)}, v{vL16}, s[{sG}:{sG+3}], 0 offen
    s_mov_b32 s{sI}, 0
    {L}_loop:
    buffer_load_dwordx4 {vr(GX,4)}, v{vL16}, s[{sX}:{sX+3}], s{sXo} offen
    buffer_load_dwordx4 {vr(GX+4,4)}, v{vL16}, s[{sX}:{sX+3}], s{sXo} offen offset:1024
    s_add_u32 s{sXo}, s{sXo}, 2048
    s_waitcnt vmcnt(0)
    v_dot2_f32_bf16 v{t0}, v{GX}, v{GW}, 0
    v_dot2_f32_bf16 v{t1}, v{GX+4}, v{GW}, 0
    """)
    for i in range(1, 4):
        p(f"v_dot2_f32_bf16 v{t0}, v{GX+i}, v{GW+i}, v{t0}")
        p(f"v_dot2_f32_bf16 v{t1}, v{GX+4+i}, v{GW+i}, v{t1}")
    p(f"""
    s_nop 3
    v_permlane32_swap_b32 v{t0}, v{t1}
    s_nop 1
    v_add_f32 v{t0}, v{t0}, v{t1}
    s_nop 1
    v_add_f32_dpp v{t0}, v{t0}, v{t0} row_ror:8 row_mask:0xf bank_mask:0xf
    s_nop 1
    v_add_f32_dpp v{t0}, v{t0}, v{t0} row_ror:4 row_mask:0xf bank_mask:0xf
    s_nop 1
    v_add_f32_dpp v{t0}, v{t0}, v{t0} row_ror:2 row_mask:0xf bank_mask:0xf
    s_nop 1
    v_add_f32_dpp v{t0}, v{t0}, v{t0} row_ror:1 row_mask:0xf bank_mask:0xf
    v_mov_b32 v{t1}, v{t0}
    s_nop 1
    v_permlane16_swap_b32 v{t0}, v{t1}
    s_nop 1
    v_add_f32 v{t0}, v{t0}, v{t1}
    v_cvt_pk_bf16_f32 v{t0}, v{t0}, v{t0}
    v_lshlrev_b32 v{t0}, 16, v{t0}
    v_mul_f32 v{t0}, {f32(-LOG2E)}, v{t0}
    v_exp_f32 v{t0}, v{t0}
    s_nop 0
    v_add_f32 v{t0}, 1.0, v{t0}
    v_rcp_f32 v{t0}, v{t0}
    s_nop 0
    v_cvt_pk_bf16_f32 v{t0}, v{t0}, v{t0}
    v_lshlrev_b32 v{t0}, 16, v{t0}
    buffer_store_dword v{t0}, v{vA}, s[{sWS}:{sWS+3}], s{sGo} offen{C.sc}
    s_add_u32 s{sGo}, s{sGo}, 8
    s_add_u32 s{sI}, s{sI}, 1
    s_cmp_lt_u32 s{sI}, 2
    s_cbranch_scc1 {L}_loop
    """)
    return V.next

def up(p, L):
    sX, sWg, sWu = 12, 16, 20
    sMt, sFt, sXb, sWb, sU, sXo, sWo, sI, sMx, sMw, sWs, sRd, sH = 24, 25, 26, 27, 28, 29, 30, 31, 32, 33, 34, 35, 36
    V = Alloc(VB, 252)
    vX = V("vX", 2); vW = V("vW", 4); vAx = V("vAx", 4); vAw0 = V("vAw0"); vAw = V("vAw", 4)
    XF = V("xf", 32, 4)
    WF = [V("wf0", 16, 4), V("wf1", 16, 4)]
    ACC = V("acc", 128, 4)
    XR = 49152
    p(f"""
    s_lshr_b32 s{sT2}, s{sID}, 3
    s_cmp_lt_u32 s{sT2}, 28
    s_cbranch_scc1 {L}_main
    """)
    if C.fused and int(os.environ.get("CPF", "0")):
        p(f"""
        s_getpc_b64 s[52:53]
        {L}_pc:
        s_sub_u32 s52, s52, {L}_pc-{NAME}_kernel
        s_subb_u32 s53, s53, 0
        v_lshlrev_b32 v{t0}, 7, v0
        v_min_u32 v{t0}, {NAME}_kernel_last-{NAME}_kernel, v{t0}
        global_load_dword v252, v{t0}, s[52:53]
        """)
    if C.fused:
        p(f"""
        s_cmp_lg_u32 s{sWave}, 0
        s_cbranch_scc1 {L}_done
        s_waitcnt lgkmcnt(0)
        v_mov_b32 v{vTag}, 0
        s_cmp_lg_u32 s{sID}, 224
        s_cbranch_scc1 {L}_np
        """)
        tag_publish(p, L)
        p(f"{L}_np:")
        p("s_nop 0")
        tag_get(p, L + "_i")
    p(f"""
    s_branch {L}_done
    {L}_main:
    """)
    stamp(p, 0)
    ldsrd(p, sX, 0, 0x200000)
    ldsrd(p, sWg, 32, 512*3584)
    ldsrd(p, sWu, 40, 512*3584)
    p(f"""
    s_and_b32 s{sT}, s{sID}, 3
    s_lshl_b32 s{sMt}, s{sT}, 2
    s_and_b32 s{sT}, s{sT2}, 3
    s_add_u32 s{sMt}, s{sMt}, s{sT}
    s_bfe_u32 s{sFt}, s{sID}, 0x10002
    s_mul_i32 s{sFt}, s{sFt}, 7
    s_lshr_b32 s{sT2}, s{sT2}, 2
    s_add_u32 s{sFt}, s{sFt}, s{sT2}
    s_lshl_b32 s{sT}, s{sT}, 1
    s_add_u32 s{sU}, s{sT}, s{sT2}
    s_lshl_b32 s{sU}, s{sU}, 1
    s_lshl_b32 s{sXb}, s{sMt}, 17
    s_lshl_b32 s{sWb}, s{sFt}, 8
    s_cmp_ge_u32 s{sFt}, 8
    s_cbranch_scc1 {L}_ng
    s_lshl_b32 s{sT3}, s{sMt}, 3
    s_add_u32 s{sT3}, s{sT3}, s{sFt}
    """)
    ng = gate(p, L + "_g")
    p(f"""
    s_waitcnt vmcnt(0)
    {L}_ng:
    v_lshrrev_b32 v{t0}, 3, v{vL}
    v_lshl_add_u32 v{t0}, v{vWv}, 4, v{t0}
    v_lshlrev_b32 v{vX}, 10, v{t0}
    v_lshrrev_b32 v{t0}, 4, v{vL}
    v_xor_b32 v{t1}, v{t0}, v{vL}
    v_and_b32 v{t1}, 7, v{t1}
    v_lshl_add_u32 v{vX}, v{t1}, 4, v{vX}
    v_xor_b32 v{vX+1}, 64, v{vX}
    v_add_u32 v{vX+1}, 7168, v{vX+1}
    ; W dma: row = 8w + 4jj + lane/16 ; chunk = (lane%16) ^ ((2*(lane/16)+region)<<1)
    v_lshl_add_u32 v{t1}, v{vWv}, 3, v{t0}
    v_mul_u32_u24 v{vW}, 3584, v{t1}
    v_lshlrev_b32 v{t0}, 2, v{t0}
    v_xor_b32 v{t1}, v{t0}, v{vL}
    v_and_b32 v{t1}, 15, v{t1}
    v_lshl_add_u32 v{vW}, v{t1}, 4, v{vW}
    v_add_u32 v{vW+1}, {4*3584-1024}, v{vW}
    v_xor_b32 v{vW+2}, 32, v{vW}
    v_xor_b32 v{vW+3}, 32, v{vW+1}
    s_lshl_b32 s{sMw}, s{sWave}, 11
    s_add_u32 s{sMx}, s{sMw}, {XR}
    s_mov_b32 s{sWs}, s{sMw}
    s_mov_b32 s{sI}, 0
    s_bfe_u32 s{sT}, s{sU}, 0x30001
    s_lshl_b32 s{sT}, s{sT}, 7
    s_add_u32 s{sXo}, s{sXb}, s{sT}
    s_mov_b32 m0, s{sMx}
    s_waitcnt lgkmcnt(0)
    """)
    stamp(p, 1)
    p(f"buffer_load_dwordx4 v{vX}, s[{sX}:{sX+3}], s{sXo} offen lds")
    p(f"buffer_load_dwordx4 v{vX+1}, s[{sX}:{sX+3}], s{sXo} offen offset:1024 lds")
    def group(p, par):
        p(f"""
        s_and_b32 s{sT}, s{sU}, 15
        s_mul_i32 s{sWo}, s{sT}, {32*3584}
        s_mov_b32 m0, s{sWs}
        s_add_u32 s{sWo}, s{sWo}, s{sWb}
        buffer_load_dwordx4 v{vW}, s[{sWg}:{sWg+3}], s{sWo} offen lds
        buffer_load_dwordx4 v{vW+1}, s[{sWg}:{sWg+3}], s{sWo} offen offset:1024 lds
        s_add_u32 m0, s{sWs}, 8192
        s_add_u32 s{sU}, s{sU}, 1
        buffer_load_dwordx4 v{vW+2}, s[{sWu}:{sWu+3}], s{sWo} offen lds
        buffer_load_dwordx4 v{vW+3}, s[{sWu}:{sWu+3}], s{sWo} offen offset:1024 lds
        s_add_u32 s{sI}, s{sI}, 1
        s_add_u32 s{sWs}, s{sWs}, 16384
        s_cmp_ge_u32 s{sWs}, {XR}
        s_cselect_b32 s{sWs}, s{sMw}, s{sWs}
        s_bfe_u32 s{sT}, s{sU}, 0x30001
        s_lshl_b32 s{sT}, s{sT}, 7
        s_add_u32 s{sXo}, s{sXb}, s{sT}
        s_and_b32 s{sT}, s{sI}, 3
        s_lshl_b32 s{sT}, s{sT}, 13
        s_add_u32 m0, s{sMx}, s{sT}
        """)
        if par == 0:
            p(f"s_add_u32 s{sXo}, s{sXo}, 65536")
        else:
            p(f"""
            s_cmp_eq_u32 s{sI}, 16
            s_cselect_b32 s{sXb}, {OOB}, s{sXb}
            s_cselect_b32 s{sXo}, {OOB}, s{sXo}
            s_cselect_b32 s{sWb}, {OOB}, s{sWb}
            """)
        p(f"buffer_load_dwordx4 v{vX}, s[{sX}:{sX+3}], s{sXo} offen lds")
        p(f"buffer_load_dwordx4 v{vX+1}, s[{sX}:{sX+3}], s{sXo} offen offset:1024 lds")
    group(p, 0); group(p, 1)
    xfrag_addr(p, vAx)
    p(f"""
    v_lshrrev_b32 v{t0}, 1, v{vWv}
    v_lshl_add_u32 v{vAx}, v{t0}, 13, v{vAx}
    v_add_u32 v{vAx}, {XR}, v{vAx}
    v_xor_b32 v{vAx+1}, 32, v{vAx}
    v_xor_b32 v{vAx+2}, 64, v{vAx}
    v_xor_b32 v{vAx+3}, 96, v{vAx}
    """)
    tr_lane_addr(p, vAw0, 2048, 256, 8192)
    p(f"""
    v_bfe_u32 v{t0}, v{vL}, 2, 2
    v_bfe_u32 v{t1}, v{vL}, 4, 1
    v_lshl_or_b32 v{t0}, v{t0}, 1, v{t1}
    v_and_b32 v{t1}, 1, v{vWv}
    v_lshlrev_b32 v{t1}, 2, v{t1}
    v_xor_b32 v{t0}, v{t0}, v{t1}
    v_lshl_add_u32 v{vAw0}, v{t0}, 5, v{vAw0}
    s_mov_b32 s{sRd}, 0
    s_lshl_b32 s{sT}, s{sMt}, 2
    s_and_b32 s{sT2}, s{sWave}, 2
    s_add_u32 s{sT}, s{sT}, s{sT2}
    s_mul_i32 s{sH}, s{sT}, 112
    s_lshl_b32 s{sT}, s{sFt}, 3
    s_add_u32 s{sH}, s{sH}, s{sT}
    s_and_b32 s{sT}, s{sWave}, 1
    s_lshl_b32 s{sT}, s{sT}, 2
    s_add_u32 s{sH}, s{sH}, s{sT}
    s_lshl_b32 s{sH}, s{sH}, 10
    s_add_u32 s{sH}, s{sH}, {WS_H}
    """)
    for i in range(128): p(f"v_mov_b32 v{ACC+i}, 0")
    for i in range(16): p(f"v_mov_b32 v{WF[1]+i}, 0")
    for i in range(8): p(f"v_mov_b32 v{XF+24+i}, 0")
    def xreads(p, ks):
        for mi in range(2):
            p(f"ds_read_b128 {vr(XF+8*ks+4*mi,4)}, v{vAx+ks} offset:{mi*4096}")
    def wreads(p, ks, b):
        for tt in range(4):
            for ab in range(2):
                p(f"ds_read_b64_tr_b16 {vr(WF[b]+4*tt+2*ab,2)}, v{vAw+tt} offset:{ks*4096 + ab*1024}")
    def mfmas(p, b, ks4):
        for tt in range(4):
            for mi in range(2):
                A = ACC + 64*mi + 16*tt
                p(f"{MFMA} {vr(A,16)}, {vr(WF[b]+4*tt,4)}, {vr(XF+8*ks4+4*mi,4)}, {vr(A,16)}")
    if STAMP:
        p("s_waitcnt vmcnt(6)")
        stamp(p, 2)
    if C.prio: p("s_setprio 0")
    p(f"{L}_loop:")
    for par in range(2):
        p(f"v_add_u32 v{vAw}, s{sRd}, v{vAw0}")
        for tt in range(1, 4): p(f"v_xor_b32 v{vAw+tt}, {32*tt}, v{vAw}")
        p(f"""
        s_add_u32 s{sRd}, s{sRd}, 16384
        s_cmp_eq_u32 s{sRd}, {XR}
        s_cselect_b32 s{sRd}, 0, s{sRd}
        s_waitcnt vmcnt(6) lgkmcnt(0)
        s_barrier
        """)
        g = chunks(lines(group, par))
        r0 = (lines(xreads, 0) if par == 0 else []) + lines(wreads, 0, 0)
        r1 = lines(wreads, 1, 1) + (lines(xreads, 1) + lines(xreads, 2) + lines(xreads, 3) if par == 0 else [])
        weave(p, lines(mfmas, 1, 3 if par == 0 else 1), (0, 4, r0), (1, 6, g[:3]), (7, 7, ["s_waitcnt lgkmcnt(0)"]))
        weave(p, lines(mfmas, 0, 2*par), (0, 6, r1), (1, 6, g[3:]))
    for i in range(4): p(f"v_xor_b32 v{vAx+i}, {49152 ^ 65536}, v{vAx+i}")
    p(f"""
    s_cmp_lt_u32 s{sI}, 18
    s_cbranch_scc1 {L}_loop
    s_waitcnt lgkmcnt(0)
    """)
    mfmas(p, 1, 3)
    if C.prio: p("s_setprio 2")
    stamp(p, 3)
    tag_prefetch(p)
    c0 = -2.0*math.sqrt(2.0/math.pi)*LOG2E
    c1 = c0*0.044715
    p(f"""
    s_mov_b32 s40, {f32(c1)}
    s_mov_b32 s41, {f32(c1)}
    v_mov_b32 v{WF[0]}, {f32(c0)}
    v_mov_b32 v{WF[0]+1}, {f32(c0)}
    s_add_u32 s{sT}, s{sH}, {112*1024}
    s_nop 7
    """)
    T = WF[1]
    for tt in range(4):
      for mi in range(2):
        A = ACC + 64*mi + 16*tt
        for i in range(4): p(f"v_pk_mul_f32 {vr(T+2*i,2)}, {vr(A+2*i,2)}, {vr(A+2*i,2)}")
        for i in range(4): p(f"v_pk_fma_f32 {vr(T+2*i,2)}, {vr(T+2*i,2)}, s[40:41], {vr(WF[0],2)}")
        for i in range(4): p(f"v_pk_mul_f32 {vr(T+2*i,2)}, {vr(T+2*i,2)}, {vr(A+2*i,2)}")
        for i in range(8): p(f"v_exp_f32 v{T+i}, v{T+i}")
        for i in range(4): p(f"v_pk_mul_f32 {vr(A+2*i,2)}, {vr(A+2*i,2)}, {vr(A+8+2*i,2)}")
        for i in range(4): p(f"v_pk_add_f32 {vr(T+2*i,2)}, {vr(T+2*i,2)}, 1.0 op_sel_hi:[1,0]")
        for i in range(8): p(f"v_rcp_f32 v{T+i}, v{T+i}")
        p("s_nop 0")
        for i in range(4): p(f"v_pk_mul_f32 {vr(A+2*i,2)}, {vr(A+2*i,2)}, {vr(T+2*i,2)}")
        for i in range(4): p(f"v_cvt_pk_bf16_f32 v{A+8+i}, v{A+2*i}, v{A+2*i+1}")
        so = sH if mi == 0 else sT
        p(f"buffer_store_dwordx4 {vr(A+8,4)}, v{vL16}, s[{sWS}:{sWS+3}], s{so} offen offset:{tt*1024}{C.sc}")
    if C.fused:
        p(f"""
        s_lshl_b32 s{sT2}, s{sMt}, 4
        s_add_u32 s{sT2}, s{sT2}, s{sFt}
        s_lshl_b32 s{sT2}, s{sT2}, 2
        s_add_u32 s{sT2}, s{sT2}, {FH}
        """)
        signal(p, L, sT2, True)
    stamp_out(p, 1)
    p(f"{L}_done:")
    return max(V.next, ng)

def attn(p, L):
    NR = 4; CH = 16384
    sHead, sQb, sSrc, sDst, sC, sRd, sO, sFb = 12, 13, 14, 15, 16, 17, 18, 19
    sMask = 20
    V = Alloc(VB, 252)
    vDma = V("dma"); vV0 = V("vV0"); vK = V("vK"); vV = V("vV"); vIdx = V("idx")
    QA = V("QA", 4, 4); QB = V("QB", 4, 4)
    KF = [V(f"K{i}", 4, 4) for i in range(2)]
    VF = [V(f"V{i}", 8, 4) for i in range(4)]
    SA = [V(f"SA{i}", 16, 4) for i in range(2)]
    SB = [V(f"SB{i}", 16, 4) for i in range(2)]
    OA = V("OA", 16, 4); OB = V("OB", 16, 4); CA = V("CA", 16, 4); CB = V("CB", 16, 4)
    sQo, sFo, sFq = 23, 24, 25
    stamp(p, 0)
    p(f"""
    s_and_b32 s{sT}, s{sID}, 7
    s_lshl_b32 s{sFq}, s{sT}, 7
    s_add_u32 s{sFq}, s{sFq}, {FQ}
    s_lshr_b32 s{sT2}, s{sID}, 3
    s_lshl_b32 s{sHead}, s{sT}, 2
    s_and_b32 s{sT}, s{sT2}, 3
    s_add_u32 s{sHead}, s{sHead}, s{sT}
    s_lshr_b32 s{sQb}, s{sT2}, 2
    s_lshl_b32 s{sFo}, s{sQb}, 5
    s_add_u32 s{sFo}, s{sFo}, s{sHead}
    s_lshl_b32 s{sFo}, s{sFo}, 2
    s_add_u32 s{sFo}, s{sFo}, {FO}
    v_lshl_add_u32 v{vDma}, v{vWv}, 12, v{vL16}
    s_lshl_b32 s{sDst}, s{sWave}, 12
    s_lshl_b32 s{sT}, s{sQb}, 3
    s_lshl_b32 s{sT2}, s{sWave}, 1
    s_add_u32 s{sT}, s{sT}, s{sT2}
    s_lshl_b32 s{sO}, s{sT}, 15
    s_lshl_b32 s{sT2}, s{sHead}, 10
    s_add_u32 s{sO}, s{sO}, s{sT2}
    s_add_u32 s{sO}, s{sO}, {WS_O}
    s_lshl_b32 s{sT2}, s{sHead}, 6
    s_add_u32 s{sT}, s{sT}, s{sT2}
    s_lshl_b32 s{sQo}, s{sT}, 10
    s_lshl_b32 s{sHead}, s{sHead}, 17
    s_add_u32 s{sHead}, s{sHead}, {WS_KV}
    s_mov_b32 s{sSrc}, s{sHead}
    s_mov_b32 s{sC}, 0
    """)
    def setup():
        p(f"""
        s_mov_b32 s{sMask}, 0x0000ffff
        s_mov_b32 s{sMask+1}, 0x0000ffff
        v_mov_b32 v{vIdx}, 0xdddddddd
        v_mov_b32 v{vK}, v{vL16}
        v_and_b32 v{t0}, 15, v{vL}
        v_lshlrev_b32 v{t0}, 4, v{t0}
        v_lshrrev_b32 v{t1}, 5, v{vL}
        v_lshl_add_u32 v{vV0}, v{t1}, 8, v{t0}
        v_add_u32 v{vV0}, 1024, v{vV0}
        v_mov_b32 v{vV}, v{vV0}
        v_and_b32 v{t0}, 27, v{vL}
        v_cmp_eq_u32 vcc, 16, v{t0}
        v_mov_b32 v{t1}, 0x3f803f80
        s_nop 0
        v_cndmask_b32 v{t0}, 0, v{t1}, vcc
        """)
        for b in range(4):
            for i in range(8): p(f"v_mov_b32 v{VF[b]+i}, v{t0}")
        for i in range(16):
            p(f"v_mov_b32 v{OA+i}, 0")
            p(f"v_mov_b32 v{OB+i}, 0")
            p(f"v_mov_b32 v{SB[1]+i}, 0")
    if C.fused:
        setup()
        wait_flags(p, L, sFq, 32)
        dstamp(p, 3)
    else:
        p("s_waitcnt lgkmcnt(0)")
    stamp(p, 1)
    p(f"""
    buffer_load_dwordx4 {vr(QA,4)}, v{vL16}, s[{sWS}:{sWS+3}], s{sQo} offen{C.sc}
    buffer_load_dwordx4 {vr(QB,4)}, v{vL16}, s[{sWS}:{sWS+3}], s{sQo} offen offset:1024{C.sc}
    """)
    def dma():
        p(f"""
        s_mov_b32 m0, s{sDst}
        s_add_u32 s{sDst}, s{sDst}, {CH}
        buffer_load_dwordx4 v{vDma}, s[{sWS}:{sWS+3}], s{sSrc} offen{C.sc} lds
        buffer_load_dwordx4 v{vDma}, s[{sWS}:{sWS+3}], s{sSrc} offen offset:1024{C.sc} lds
        buffer_load_dwordx4 v{vDma}, s[{sWS}:{sWS+3}], s{sSrc} offen offset:2048{C.sc} lds
        buffer_load_dwordx4 v{vDma}, s[{sWS}:{sWS+3}], s{sSrc} offen offset:3072{C.sc} lds
        s_and_b32 s{sDst}, s{sDst}, {NR*CH-1}
        s_add_u32 s{sSrc}, s{sSrc}, {CH}
        """)
    p(f"{L}_pro:")
    dma()
    p(f"""
    s_add_u32 s{sC}, s{sC}, 1
    s_cmp_lt_u32 s{sC}, {NR}
    s_cbranch_scc1 {L}_pro
    """)
    if not C.fused: setup()
    def kread(j, b): p(f"ds_read_b128 {vr(KF[b],4)}, v{vK} offset:{j*2048}")
    def vread(j, b):
        p(f"s_mov_b64 exec, s[{sMask}:{sMask+1}]")
        p(f"ds_read_b128 {vr(VF[b],4)}, v{vV} offset:{j*2048}")
        p(f"ds_read_b128 {vr(VF[b]+4,4)}, v{vV} offset:{j*2048+512}")
        p(f"s_mov_b64 exec, -1")
    p(f"""
    s_waitcnt vmcnt({4*(NR-1)})
    s_barrier
    """)
    stamp(p, 2)
    kread(0, 0); kread(1, 1); vread(0, 0); vread(1, 1)
    p(f"""
    s_waitcnt lgkmcnt(5)
    {MFMA} {vr(SA[0],16)}, {vr(KF[0],4)}, {vr(QA,4)}, 0
    {MFMA} {vr(SB[0],16)}, {vr(KF[0],4)}, {vr(QB,4)}, 0
    s_nop 10
    """)
    def rowmax(S, T, first=True):
        if first:
            p(f"v_max3_f32 v{T}, v{S}, v{S+1}, v{S+2}")
            for i in range(3, 15, 2): p(f"v_max3_f32 v{T}, v{S+i}, v{S+i+1}, v{T}")
            p(f"v_max_f32 v{T}, v{S+15}, v{T}")
        else:
            for i in range(0, 16, 2): p(f"v_max3_f32 v{T}, v{S+i}, v{S+i+1}, v{T}")
    def bcast_neg(T, T2, Cc):
        p(f"""
        v_mov_b32 v{T2}, v{T}
        s_nop 1
        v_permlane32_swap_b32 v{T}, v{T2}
        s_nop 1
        v_max_f32 v{T}, v{T}, v{T2}
        """)
        for i in range(16): p(f"v_sub_f32 v{Cc+i}, 0, v{T}")
    rowmax(SA[0], t0); bcast_neg(t0, t1, CA)
    p("s_nop 1")
    p(f"{MFMA} {vr(SA[0],16)}, {vr(KF[0],4)}, {vr(QA,4)}, {vr(CA,16)}")
    rowmax(SB[0], t0); bcast_neg(t0, t1, CB)
    p(f"""
    s_mov_b32 s{sC}, 0
    s_mov_b32 s{sRd}, 0
    {MFMA} {vr(SB[0],16)}, {vr(KF[0],4)}, {vr(QB,4)}, {vr(CB,16)}
    s_branch {L}_mid
    """)
    POS = (0, 5, 10)
    def phase(S, mf, extra):
        for i in range(16):
            for k in range(3):
                if i == POS[k]:
                    p(mf[k])
                    if k in extra: extra[k]()
            p(f"v_exp_f32 v{S+i}, v{S+i}")
    def tile(j):
        tb = j % 2; vb = (j + 2) % 4; vprev = (j + 1) % 4
        mfA = [f"{SMF} {vr(OB,16)}, {vr(VF[vprev],4)}, {vr(SB[1-tb],8)}, v{vIdx}",
               f"{SMF} {vr(OB,16)}, {vr(VF[vprev]+4,4)}, {vr(SB[1-tb]+8,8)}, v{vIdx}",
               f"{MFMA} {vr(SA[1-tb],16)}, {vr(KF[1-tb],4)}, {vr(QA,4)}, {vr(CA,16)}"]
        mfB = [f"{SMF} {vr(OA,16)}, {vr(VF[vb],4)}, {vr(SA[tb],8)}, v{vIdx}",
               f"{SMF} {vr(OA,16)}, {vr(VF[vb]+4,4)}, {vr(SA[tb]+8,8)}, v{vIdx}",
               f"{MFMA} {vr(SB[1-tb],16)}, {vr(KF[1-tb],4)}, {vr(QB,4)}, {vr(CB,16)}"]
        def kr():
            p("s_waitcnt lgkmcnt(0)")
            kread(j, tb)
        phase(SA[tb], mfA, {0: kr})
        phase(SB[tb], mfB, {1: lambda: vread(j, j % 4)})
    p(f"{L}_top:")
    p(f"""
    s_add_u32 s{sRd}, s{sRd}, {CH}
    s_and_b32 s{sRd}, s{sRd}, {NR*CH-1}
    v_add_u32 v{vK}, s{sRd}, v{vL16}
    v_add_u32 v{vV}, s{sRd}, v{vV0}
    s_cmp_ge_u32 s{sC}, {8-NR+1}
    s_cbranch_scc1 {L}_nodma
    s_waitcnt vmcnt({4*(NR-2)}) lgkmcnt(0)
    s_barrier
    """)
    dma()
    p(f"""
    s_branch {L}_go
    {L}_nodma:
    s_waitcnt vmcnt(0) lgkmcnt(0)
    s_barrier
    {L}_go:
    """)
    tile(0); tile(1)
    p(f"""
    s_cmp_eq_u32 s{sC}, 8
    s_cbranch_scc1 {L}_fin
    {L}_mid:
    """)
    for j in range(2, 8): tile(j)
    p(f"""
    s_add_u32 s{sC}, s{sC}, 1
    s_branch {L}_top
    {L}_fin:
    s_nop 1
    {SMF} {vr(OB,16)}, {vr(VF[3],4)}, {vr(SB[1],8)}, v{vIdx}
    {SMF} {vr(OB,16)}, {vr(VF[3]+4,4)}, {vr(SB[1]+8,8)}, v{vIdx}
    s_mov_b32 s{sFb}, 0
    s_waitcnt lgkmcnt(0)
    s_nop 12
    """)
    stamp(p, 3)
    p(f"""
    v_add_f32 v{t1}, v{OA+8}, v{OB+8}
    """)
    for i in range(8):
        p(f"v_fmac_f32 v{t1}, 0, v{OA+i}")
        p(f"v_fmac_f32 v{t1}, 0, v{OB+i}")
    p(f"""
    v_cmp_nge_f32 vcc, {f32(2.0**30)}, v{t1}
    s_nop 1
    s_cbranch_vccz {L}_out
    """)
    sK = 22
    p(f"""
    v_mov_b32 v{CA}, 0xff800000
    v_mov_b32 v{CB}, 0xff800000
    s_mov_b32 s{sK}, s{sHead}
    s_mov_b32 s{sC}, 0
    {L}_fb1:
    buffer_load_dwordx4 {vr(KF[0],4)}, v{vL16}, s[{sWS}:{sWS+3}], s{sK} offen{C.sc}
    s_waitcnt vmcnt(0)
    {MFMA} {vr(SA[0],16)}, {vr(KF[0],4)}, {vr(QA,4)}, 0
    {MFMA} {vr(SB[0],16)}, {vr(KF[0],4)}, {vr(QB,4)}, 0
    s_nop 15
    """)
    rowmax(SA[0], CA, False)
    rowmax(SB[0], CB, False)
    p(f"""
    s_add_u32 s{sK}, s{sK}, 2048
    s_add_u32 s{sC}, s{sC}, 1
    s_cmp_lt_u32 s{sC}, 64
    s_cbranch_scc1 {L}_fb1
    v_mov_b32 v{t0}, v{CA}
    """)
    bcast_neg(t0, t1, CA)
    p(f"v_mov_b32 v{t0}, v{CB}")
    bcast_neg(t0, t1, CB)
    for i in range(16):
        p(f"v_mov_b32 v{OA+i}, 0")
        p(f"v_mov_b32 v{OB+i}, 0")
    p(f"""
    s_mov_b32 s{sK}, s{sHead}
    s_mov_b32 s{sC}, 0
    {L}_fb2:
    buffer_load_dwordx4 {vr(KF[0],4)}, v{vL16}, s[{sWS}:{sWS+3}], s{sK} offen{C.sc}
    s_mov_b64 exec, s[{sMask}:{sMask+1}]
    buffer_load_dwordx4 {vr(VF[0],4)}, v{vV0}, s[{sWS}:{sWS+3}], s{sK} offen{C.sc}
    buffer_load_dwordx4 {vr(VF[0]+4,4)}, v{vV0}, s[{sWS}:{sWS+3}], s{sK} offen offset:512{C.sc}
    s_mov_b64 exec, -1
    s_waitcnt vmcnt(0)
    {MFMA} {vr(SA[0],16)}, {vr(KF[0],4)}, {vr(QA,4)}, {vr(CA,16)}
    {MFMA} {vr(SB[0],16)}, {vr(KF[0],4)}, {vr(QB,4)}, {vr(CB,16)}
    s_nop 15
    """)
    for i in range(16): p(f"v_exp_f32 v{SA[0]+i}, v{SA[0]+i}")
    for i in range(16): p(f"v_exp_f32 v{SB[0]+i}, v{SB[0]+i}")
    p(f"""
    s_nop 2
    {SMF} {vr(OA,16)}, {vr(VF[0],4)}, {vr(SA[0],8)}, v{vIdx}
    {SMF} {vr(OA,16)}, {vr(VF[0]+4,4)}, {vr(SA[0]+8,8)}, v{vIdx}
    {SMF} {vr(OB,16)}, {vr(VF[0],4)}, {vr(SB[0],8)}, v{vIdx}
    {SMF} {vr(OB,16)}, {vr(VF[0]+4,4)}, {vr(SB[0]+8,8)}, v{vIdx}
    s_add_u32 s{sK}, s{sK}, 2048
    s_add_u32 s{sC}, s{sC}, 1
    s_cmp_lt_u32 s{sC}, 64
    s_cbranch_scc1 {L}_fb2
    s_nop 15
    {L}_out:
    """)
    def fin(O, off):
        p(f"v_rcp_f32 v{t0}, v{O+8}")
        p("s_nop 0")
        for i in range(8): p(f"v_mul_f32 v{O+i}, v{O+i}, v{t0}")
        for i in range(4): p(f"v_cvt_pk_bf16_f32 v{O+i}, v{O+2*i}, v{O+2*i+1}")
        p(f"buffer_store_dwordx4 {vr(O,4)}, v{vL16}, s[{sWS}:{sWS+3}], s{off} offen{C.sc if C.tail else ''}")
    p(f"s_add_u32 s{sT}, s{sO}, 32768")
    fin(OA, sO)
    fin(OB, sT)
    if C.tail: signal(p, L + "_o", sFo, False)
    stamp_out(p, 2)
    return V.next

def down(p, L, final):
    KT = 32 if final else 112
    NST = KT // 8
    NS = 4
    tail = C.tail and not final
    sW, sOut, sWo = 12, 16, 28
    sMt, sNt, sWoff, sM0, sXoff, sS, sB, sR = 20, 21, 22, 23, 24, 25, 26, 27
    V = Alloc(VB, 252)
    vL16b = V("l16b"); vW = V("vW", 4); vAw = V("vAw", 2); vG = V("g", 4, 2); vOut = V("vOut")
    XF = [V(f"xf{i}", 16, 4) for i in range(NS)]
    WF = [V("wf0", 8, 4), V("wf1", 8, 4)]
    ACC = V("acc", 64, 4)
    if tail: AC2 = V("ac2", 64, 4)
    else: BF = V("bf", 8, 4)
    sc = "" if final else C.sc
    stamp(p, 0)
    ldsrd(p, sW, 16 if final else 48, KT*16*1024)
    if final or tail: ldsrd(p, sOut, 64, 0x200000)
    if tail: ldsrd(p, sWo, 16, 512*1024)
    p(f"""
    s_and_b32 s{sT}, s{sID}, 7
    s_lshl_b32 s{sMt}, s{sT}, 2
    s_bfe_u32 s{sT}, s{sID}, 0x20003
    s_add_u32 s{sMt}, s{sMt}, s{sT}
    s_lshr_b32 s{sNt}, s{sID}, 5
    v_add_u32 v{vL16b}, {KT*1024}, v{vL16}
    v_lshrrev_b32 v{t0}, 3, v{vL}
    v_lshlrev_b32 v{t0}, 10, v{t0}
    v_bfe_u32 v{t1}, v{vL}, 4, 1
    v_lshlrev_b32 v{t1}, 2, v{t1}
    v_xor_b32 v{t1}, v{t1}, v{vL}
    v_and_b32 v{t1}, 7, v{t1}
    v_lshl_add_u32 v{vW}, v{t1}, 4, v{t0}
    v_add_u32 v{vW+1}, 7168, v{vW}
    v_add_u32 v{vW+2}, {2*7168}, v{vW}
    v_add_u32 v{vW+3}, {3*7168}, v{vW}
    """)
    if final:
        p(f"""
        s_add_u32 s{sR}, s{sNt}, s{sT}
        s_and_b32 s{sR}, s{sR}, 3
        """)
    else:
        p(f"""
        s_mul_i32 s{sR}, s{sNt}, 7
        s_lshr_b32 s{sR}, s{sR}, 2
        s_mul_i32 s{sT}, s{sT}, 7
        s_lshr_b32 s{sT}, s{sT}, 1
        s_add_u32 s{sR}, s{sR}, s{sT}
        s_sub_u32 s{sT}, s{sR}, 14
        s_cmp_ge_u32 s{sR}, 14
        s_cselect_b32 s{sR}, s{sT}, s{sR}
        """)
    p(f"""
    s_mul_i32 s{sT}, s{sWave}, {NST}
    s_add_u32 s{sT}, s{sT}, s{sR}
    s_lshl_b32 s{sWoff}, s{sT}, 15
    s_lshl_b32 s{sT2}, s{sNt}, 7
    s_add_u32 s{sWoff}, s{sWoff}, s{sT2}
    s_lshl_b32 s{sM0}, s{sWave}, 14
    s_mul_i32 s{sXoff}, s{sMt}, {2*KT*1024}
    s_lshl_b32 s{sT}, s{sT}, 11
    s_add_u32 s{sXoff}, s{sXoff}, s{sT}
    s_add_u32 s{sXoff}, s{sXoff}, {WS_O if final else WS_H}
    s_lshl_b32 s{sB}, s{sID}, 13
    s_lshl_b32 s{sT}, s{sWave}, 11
    s_add_u32 s{sB}, s{sB}, s{sT}
    s_add_u32 s{sB}, s{sB}, {WS_B}
    """)
    def outaddr():
        p(f"""
        v_and_b32 v{t0}, 31, v{vL}
        v_lshrrev_b32 v{t1}, 1, v{vWv}
        v_lshl_add_u32 v{t0}, v{t1}, 5, v{t0}
        v_lshlrev_b32 v{vOut}, 10, v{t0}
        v_and_b32 v{t1}, 1, v{vWv}
        v_lshl_add_u32 v{vOut}, v{t1}, 6, v{vOut}
        v_lshrrev_b32 v{t1}, 5, v{vL}
        v_lshl_add_u32 v{vOut}, v{t1}, 4, v{vOut}
        """)
    def setup():
        tr_lane_addr(p, vAw, 1024, 128, 32)
        p(f"""
        v_bfe_u32 v{t0}, v{vL}, 3, 1
        v_lshl_add_u32 v{vAw}, v{t0}, 6, v{vAw}
        v_lshl_add_u32 v{vAw}, v{vWv}, 14, v{vAw}
        v_xor_b32 v{vAw+1}, 64, v{vAw}
        """)
        for i in range(64): p(f"v_mov_b32 v{ACC+i}, 0")
        if not final:
            for i in range(8): p(f"v_mov_b32 v{WF[1]+i}, 0")
            for i in range(8): p(f"v_mov_b32 v{XF[3]+8+i}, 0")
    fusedw = C.fused and not final
    if fusedw:
        setup()
        if tail: outaddr()
        p(f"""
        s_lshr_b32 s{sT3}, s{sMt}, 1
        s_lshl_b32 s{sT3}, s{sT3}, 6
        s_add_u32 s{sT3}, s{sT3}, {FH}
        s_waitcnt lgkmcnt(0)
        """)
        wait_flags(p, L, sT3, 14)
        if C.prio: p("s_setprio 0")
    else:
        p("s_waitcnt lgkmcnt(0)")
    stamp(p, 1)
    def wdma(p, srdw, soff):
        for j in range(4):
            p(f"buffer_load_dwordx4 v{vW+j}, s[{srdw}:{srdw+3}], s{soff} offen offset:{j*1024} lds")
    def dma(p, u):
        p(f"""
        s_add_u32 m0, s{sM0}, {u*4096}
        buffer_load_dwordx4 {vr(XF[u],4)}, v{vL16}, s[{sWS}:{sWS+3}], s{sXoff} offen{sc}
        buffer_load_dwordx4 v{vW}, s[{sW}:{sW+3}], s{sWoff} offen lds
        buffer_load_dwordx4 v{vW+1}, s[{sW}:{sW+3}], s{sWoff} offen offset:1024 lds
        buffer_load_dwordx4 {vr(XF[u]+4,4)}, v{vL16b}, s[{sWS}:{sWS+3}], s{sXoff} offen{sc}
        buffer_load_dwordx4 v{vW+2}, s[{sW}:{sW+3}], s{sWoff} offen offset:2048 lds
        buffer_load_dwordx4 v{vW+3}, s[{sW}:{sW+3}], s{sWoff} offen offset:3072 lds
        buffer_load_dwordx4 {vr(XF[u]+8,4)}, v{vL16}, s[{sWS}:{sWS+3}], s{sXoff} offen offset:1024{sc}
        buffer_load_dwordx4 {vr(XF[u]+12,4)}, v{vL16b}, s[{sWS}:{sWS+3}], s{sXoff} offen offset:1024{sc}
        s_add_u32 s{sR}, s{sR}, 1
        s_cmp_eq_u32 s{sR}, {NST}
        s_cselect_b32 s{sT}, {1-NST}, 1
        s_lshl_b32 s{sT2}, s{sT}, 15
        s_add_u32 s{sWoff}, s{sWoff}, s{sT2}
        s_lshl_b32 s{sT2}, s{sT}, 11
        s_add_u32 s{sXoff}, s{sXoff}, s{sT2}
        """)
    npro = NS if final else NS-1
    for i in range(npro): dma(p, i)
    if final:
        outaddr()
        p(f"""
        v_lshlrev_b32 v{t1}, 2, v{t0}
        s_lshl_b32 s{sT}, s{sMt}, 8
        s_add_u32 s{sT}, s{sT}, {WS_G}
        buffer_load_dword v{vG}, v{t1}, s[{sWS}:{sWS+3}], s{sT} offen
        buffer_load_dwordx4 {vr(BF,4)}, v{vL16}, s[{sWS}:{sWS+3}], s{sB} offen
        buffer_load_dwordx4 {vr(BF+4,4)}, v{vL16}, s[{sWS}:{sWS+3}], s{sB} offen offset:1024
        """)
    if not fusedw: setup()
    def reads(p, u, ks, b):
        for t in range(2):
            for ab in range(2):
                p(f"ds_read_b64_tr_b16 {vr(WF[b]+4*t+2*ab,2)}, v{vAw+t} offset:{u*4096 + ks*2048 + ab*512}")
    def mfmas(p, b, xf, acc=ACC, zero=False):
        for mi in range(2):
            for t in range(2):
                A = acc + 16*(2*mi+t)
                p(f"{MFMA} {vr(A,16)}, {vr(WF[b]+4*t,4)}, {vr(xf+4*mi,4)}, {'0' if zero else vr(A,16)}")
    if STAMP:
        p(f"s_waitcnt vmcnt({27 if final else 16})")
        stamp(p, 2)
    if final:
        for u in range(4):
            p(f"s_waitcnt vmcnt({8*(3-u)+3})")
            reads(p, u, 0, 0)
            reads(p, u, 1, 1)
            p("s_waitcnt lgkmcnt(4)")
            mfmas(p, 0, XF[u])
            p("s_waitcnt lgkmcnt(0)")
            mfmas(p, 1, XF[u]+8)
    else:
        p(f"s_mov_b32 s{sS}, 0")
        p(f"{L}_loop:")
        for u in range(4):
            p(f"s_waitcnt vmcnt({8*(NS-2)}) lgkmcnt(0)")
            reads(p, u, 0, 0)
            mfmas(p, 1, XF[(u+3) % 4]+8)
            if u == 2:
                p(f"""
                s_cmp_eq_u32 s{sS}, 3
                s_cbranch_scc1 {L}_done
                """)
            if u == 3:
                p(f"""
                s_cmp_eq_u32 s{sS}, 2
                s_cselect_b32 s{sXoff}, {OOB}, s{sXoff}
                s_cselect_b32 s{sWoff}, {OOB}, s{sWoff}
                """)
            reads(p, u, 1, 1)
            p("s_waitcnt lgkmcnt(4)")
            weave(p, lines(mfmas, 0, XF[u]), (0, 3, chunks(lines(dma, (u+3) % 4))))
        p(f"""
        s_add_u32 s{sS}, s{sS}, 1
        s_branch {L}_loop
        {L}_done:
        """)
    stamp(p, 3)
    if tail:
        dstamp(p, 6)
        if C.prio: p("s_setprio 2")
        p(f"""
        s_waitcnt vmcnt(0) lgkmcnt(0)
        s_lshl_b32 s{sWoff}, s{sWave}, 17
        s_lshl_b32 s{sT2}, s{sNt}, 7
        s_add_u32 s{sWoff}, s{sWoff}, s{sT2}
        v_and_b32 v{t0}, 31, v{vL}
        v_lshlrev_b32 v{t1}, 2, v{t0}
        s_lshl_b32 s{sT}, s{sMt}, 8
        s_add_u32 s{sT}, s{sT}, {WS_G}
        buffer_load_dword v{vG}, v{t1}, s[{sWS}:{sWS+3}], s{sT} offen sc1
        buffer_load_dword v{vG+2}, v{t1}, s[{sWS}:{sWS+3}], s{sT} offen offset:128 sc1
        """)
        for u in range(4):
            p(f"s_add_u32 m0, s{sM0}, {u*4096}")
            p("s_nop 0")
            wdma(p, sWo, sWoff)
            p(f"s_add_u32 s{sWoff}, s{sWoff}, 32768")
        p(f"""
        s_lshl_b32 s{sXoff}, s{sMt}, 16
        s_lshl_b32 s{sT}, s{sWave}, 13
        s_add_u32 s{sXoff}, s{sXoff}, s{sT}
        s_add_u32 s{sXoff}, s{sXoff}, {WS_O}
        v_add_u32 v{vL16b}, 32768, v{vL16}
        s_lshr_b32 s{sT3}, s{sMt}, 2
        s_lshl_b32 s{sT3}, s{sT3}, 7
        s_add_u32 s{sT3}, s{sT3}, {FO}
        s_waitcnt vmcnt(16)
        """)
        for mi in range(2):
            p(f"""
            v_sub_f32 v{t0}, 1.0, v{vG+2*mi}
            v_cvt_pk_bf16_f32 v{t0}, v{t0}, v{t0}
            v_lshlrev_b32 v{t0}, 16, v{t0}
            v_mov_b32 v{vG+2*mi+1}, v{vG+2*mi}
            """)
            for i in range(32): p(f"v_mul_f32 v{ACC+32*mi+i}, v{ACC+32*mi+i}, v{t0}")
        wait_flags(p, L + "_o", sT3, 32)
        stamp(p, 5)
        for u in range(4):
            p(f"buffer_load_dwordx4 {vr(XF[u],4)}, v{vL16}, s[{sWS}:{sWS+3}], s{sXoff} offen offset:{(u%2)*2048} sc1")
            p(f"buffer_load_dwordx4 {vr(XF[u]+4,4)}, v{vL16b}, s[{sWS}:{sWS+3}], s{sXoff} offen offset:{(u%2)*2048} sc1")
            p(f"buffer_load_dwordx4 {vr(XF[u]+8,4)}, v{vL16}, s[{sWS}:{sWS+3}], s{sXoff} offen offset:{(u%2)*2048+1024} sc1")
            p(f"buffer_load_dwordx4 {vr(XF[u]+12,4)}, v{vL16b}, s[{sWS}:{sWS+3}], s{sXoff} offen offset:{(u%2)*2048+1024} sc1")
            if u == 1: p(f"s_add_u32 s{sXoff}, s{sXoff}, 4096")
        p("s_waitcnt vmcnt(16)")
        reads(p, 0, 0, 0)
        for u in range(4):
            reads(p, u, 1, 1)
            p(f"s_waitcnt vmcnt({4*(3-u)+2}) lgkmcnt(4)")
            mfmas(p, 0, XF[u], AC2, u == 0)
            if u < 3: reads(p, u+1, 0, 0)
            p(f"s_waitcnt vmcnt({4*(3-u)}) lgkmcnt({4 if u < 3 else 0})")
            mfmas(p, 1, XF[u]+8, AC2)
        stamp(p, 6)
        p("s_nop 9")
        for j in range(4):
            for i in range(8):
                p(f"v_pk_fma_f32 {vr(ACC+16*j+2*i,2)}, {vr(AC2+16*j+2*i,2)}, {vr(vG+2*(j//2),2)}, {vr(ACC+16*j+2*i,2)}")
    p(f"""
    s_waitcnt vmcnt(0) lgkmcnt(0)
    s_barrier
    v_lshl_add_u32 v{t0}, v{vWv}, 12, v{vL16}
    v_lshl_add_u32 v{t1}, v{vWv}, 14, v{vL16}
    s_nop 9
    """)
    for j in range(4):
        for q in range(4):
            p(f"ds_write_b128 v{t0}, {vr(ACC+16*j+4*q,4)} offset:{j*16384 + q*1024}")
    p(f"""
    s_waitcnt lgkmcnt(0)
    s_barrier
    """)
    for w in range(4):
        for q in range(4):
            p(f"ds_read_b128 {vr(ACC+16*w+4*q,4)}, v{t1} offset:{w*4096 + q*1024}")
    p("s_waitcnt lgkmcnt(8)")
    for i in range(8): p(f"v_pk_add_f32 {vr(ACC+2*i,2)}, {vr(ACC+2*i,2)}, {vr(ACC+16+2*i,2)}")
    p("s_waitcnt lgkmcnt(0)")
    for i in range(8): p(f"v_pk_add_f32 {vr(ACC+32+2*i,2)}, {vr(ACC+32+2*i,2)}, {vr(ACC+48+2*i,2)}")
    for i in range(8): p(f"v_pk_add_f32 {vr(ACC+2*i,2)}, {vr(ACC+2*i,2)}, {vr(ACC+32+2*i,2)}")
    if final or tail:
        p(f"""
        s_lshl_b32 s{sT}, s{sMt}, 16
        s_lshl_b32 s{sT2}, s{sNt}, 7
        s_add_u32 s{sT}, s{sT}, s{sT2}
        """)
    if final:
        p(f"""
        v_sub_f32 v{t0}, 1.0, v{vG}
        v_cvt_pk_bf16_f32 v{t0}, v{t0}, v{t0}
        v_lshlrev_b32 v{t0}, 16, v{t0}
        """)
        for i in range(8):
            p(f"v_lshlrev_b32 v{ACC+16+2*i}, 16, v{BF+i}")
            p(f"v_and_b32 v{ACC+17+2*i}, 0xffff0000, v{BF+i}")
        for i in range(16):
            p(f"v_mul_f32 v{ACC+i}, v{ACC+i}, v{vG}")
            p(f"v_fmac_f32 v{ACC+i}, v{ACC+16+i}, v{t0}")
    for i in range(8): p(f"v_cvt_pk_bf16_f32 v{ACC+i}, v{ACC+2*i}, v{ACC+2*i+1}")
    if final or tail:
        p(f"buffer_store_dwordx4 {vr(ACC,4)}, v{vOut}, s[{sOut}:{sOut+3}], s{sT} offen")
        p(f"buffer_store_dwordx4 {vr(ACC+4,4)}, v{vOut}, s[{sOut}:{sOut+3}], s{sT} offen offset:32")
    else:
        p(f"buffer_store_dwordx4 {vr(ACC,4)}, v{vL16}, s[{sWS}:{sWS+3}], s{sB} offen")
        p(f"buffer_store_dwordx4 {vr(ACC+4,4)}, v{vL16}, s[{sWS}:{sWS+3}], s{sB} offen offset:1024")
    stamp_out(p, 4 if final else 3, 8 if tail else 5)
    return V.next

def single(name, body):
    p = Prog()
    p(f"""
    s_cmp_ge_u32 s2, 256
    s_cbranch_scc1 {name}_end
    s_mov_b32 s{sID}, s2
    """)
    common(p)
    nv = body(p, name)
    p(f"{name}_end:")
    p("s_endpgm")
    return (name, p.text(), nv, LDS_WG, 256)
def dual(name, a, b):
    p = Prog()
    p(f"""
    s_cmp_ge_u32 s2, 512
    s_cbranch_scc1 {name}_end
    s_and_b32 s{sID}, s2, 255
    """)
    common(p)
    p(f"""
    s_cmp_ge_u32 s2, 256
    s_cbranch_scc1 {name}_b
    """)
    na = a(p, name + "_A")
    p(f"{name}_end:")
    p("s_endpgm")
    p(f"{name}_b:")
    nb = b(p, name + "_B")
    p(f"{name}_last:")
    p("s_endpgm")
    return (name, p.text(), max(na, nb, 129), LDS_WG, 512)

def emit(ks, path):
    out = "; generated by gen3.py (hand-written generator)\n"
    for n, txt, nv, lds, g in ks:
        if len(ks) == 1 and n == NAME + "_kernel" and not os.environ.get("LIST"):
            out += f"; @launch grid=({g},1,1) block=(256,1,1) lds={lds}\n"
        else:
            out += f"; @launch kernel={n} grid=({g},1,1) block=(256,1,1) lds={lds}\n"
    out += '.amdgcn_target "amdgcn-amd-amdhsa--gfx950"\n.text\n'
    for n, txt, nv, lds, g in ks: out += kernel_header(n) + txt
    out += '.section .rodata,"a"\n'
    for n, txt, nv, lds, g in ks:
        out += ".p2align 6\n" + kernel_desc(n, nv)
        print(n, "vgprs", nv, "lds", lds, "lines", txt.count("\n"), file=sys.stderr)
    open(path, "w").write(out)

dn = lambda p, L: down(p, L, False)
fn = lambda p, L: down(p, L, True)
def build(cfg, path):
    if cfg == "sep":
        ks = [single("qkv_kernel", qkv), single("up_kernel", up), single("attn_kernel", attn), single("down_kernel", dn), single("fin_kernel", fn)]
    elif cfg == "B3":
        ks = [dual("k1_kernel", qkv, up), dual("k2_kernel", attn, dn), single("fin_kernel", fn)]
    elif cfg in ("P2", "P1"):
        C.fused = True; C.sc = " sc1"; C.tail = cfg == "P1"; C.prio = int(os.environ.get("PRIO", "0"))
        def A(p, L):
            dstamp(p, 1, True); a = qkv(p, L + "q"); dstamp(p, 2); b = attn(p, L + "a"); dstamp(p, 4)
            return max(a, b, 256)
        def B(p, L):
            a = up(p, L + "u"); dstamp(p, 5); b = dn(p, L + "d")
            if DSTAMP: p("s_waitcnt vmcnt(0)")
            dstamp(p, 7)
            return max(a, b)
        ks = [dual(NAME + "_kernel", A, B)]
        if cfg == "P2":
            C.fused = False; C.sc = ""
            ks.append(single("fin_kernel", fn))
    elif cfg == "q2":
        k = single("qkv_kernel", qkv); ks = [k]; rep = 3
    elif cfg == "u2":
        k = single("up_kernel", up); ks = [k]; rep = 3
    elif cfg == "d2":
        k = single("down_kernel", dn); ks = [k]; rep = 3
    elif cfg == "f2":
        k = single("fin_kernel", fn); ks = [k]; rep = 3
    emit(ks, path)
    if cfg[1] == "2" and cfg[0] != "P":
        t = open(path).read().split("\n")
        t = [t[0], t[1], t[1]] + t[1:]
        open(path, "w").write("\n".join(t))

if __name__ == "__main__":
    build(sys.argv[1], sys.argv[2] if len(sys.argv) > 2 else f"cdna_kernels/{NAME}.s")
```
